```python
import torch

def _softmax(x, axis=-1):
    return torch.softmax(x, dim=axis)
def _gelu(x):
    return torch.nn.functional.gelu(x, approximate="tanh")
def _silu(x):
    return torch.nn.functional.silu(x)
def _sigmoid(x):
    return torch.sigmoid(x)
def _layernorm(x, axis=-1, eps=1e-5):
    m = x.mean(dim=axis, keepdim=True)
    v = x.var(dim=axis, keepdim=True, unbiased=False)
    return (x - m) / torch.sqrt(v + eps)
def _scatter_add(tgt, idx, src, axis=0):
    return tgt.clone().index_add_(axis, idx, src)
def _segment_sum(src, seg, n):
    out = torch.zeros((n,) + src.shape[1:], dtype=src.dtype)
    return out.index_add_(0, seg, src)
def _pad(x, pw):
    flat = tuple(v for pair in reversed(pw) for v in pair)
    return torch.nn.functional.pad(x, flat)

kernel_name = 'interleave_layers__spectral_gfnet__sliding_block__prompt'

def setup_inputs():

    _w = (lambda a: (lambda t: t.to(torch.bfloat16) if t.is_floating_point() else t)(torch.as_tensor(a)))
    def _A_setup():
        B, S, D = 1, 2048, 512
        Df = D // 2 + 1
        return {
            "x": _w((lambda *s: torch.randn(*s, dtype=torch.bfloat16) * 0.05)(B, S, D)),
            "w_r": _w((lambda *s: torch.randn(*s, dtype=torch.bfloat16) * 1.6)(S, Df) * 0.02),
            "w_i": _w((lambda *s: torch.randn(*s, dtype=torch.bfloat16) * 1.6)(S, Df) * 0.02),
        }
    _A_in = _A_setup()

    def _B_setup():
        B, S, D = 1, 2048, 512
        return {
            "x": _w((lambda *s: torch.randn(*s, dtype=torch.bfloat16) * 0.05)(B, S, D)),
            "wqkv": _w((lambda *s: torch.randn(*s, dtype=torch.bfloat16) * 0.05)(D, 3 * D)),
            "wo": _w((lambda *s: torch.randn(*s, dtype=torch.bfloat16) * 0.05)(D, D)),
        }
    _B_in = _B_setup()

    return {
        "A_x": _A_in["x"],
        "A_w_r": _A_in["w_r"],
        "A_w_i": _A_in["w_i"],
        "B_x": _B_in["x"],
        "B_wqkv": _B_in["wqkv"],
        "B_wo": _B_in["wo"],
    }

def reference(A_x, A_w_r, A_w_i, B_x, B_wqkv, B_wo):
    def _A_ref(x, w_r, w_i):
        B, S, D = x.shape
        X = (lambda x, axes=(-2,-1): torch.fft.rfft2(x.float(), dim=axes))(x, axes=(-2, -1))
        W = w_r + 1j * w_i
        X = X * W
        y = (lambda x, s, axes=(-2,-1): torch.fft.irfft2(x, s=s, dim=axes).to(torch.bfloat16))(X, (S, D), axes=(-2, -1))
        return y

    def _B_ref(x, wqkv, wo):
        B, S, D = x.shape
        H = 32; Dh = D // H; W = 256
        qkv = (lambda x, *d: x.permute(*d))((x @ wqkv).reshape(B, S, 3, H, Dh), 2, 0, 3, 1, 4)
        q, k, v = qkv[0], qkv[1], qkv[2]
        scores = torch.einsum("bhqd,bhkd->bhqk", q, k) * (Dh ** -0.5)
        idx = torch.arange(S)
        mask = (idx[:, None] - idx[None, :] >= 0) & (idx[:, None] - idx[None, :] < W)
        scores = torch.where(mask[None, None], scores, -1e9)
        p = _softmax(scores, axis=-1)
        o = torch.einsum("bhqk,bhkd->bhqd", p, v)
        return (lambda x, *d: x.permute(*d))(o, 0, 2, 1, 3).reshape(B, S, D) @ wo

    x = A_x
    x = x + _A_ref(_layernorm(x, axis=-1), A_w_r, A_w_i)
    x = x + _B_ref(_layernorm(x, axis=-1), B_wqkv, B_wo)
    x = x + _A_ref(_layernorm(x, axis=-1), A_w_r, A_w_i)
    x = x + _B_ref(_layernorm(x, axis=-1), B_wqkv, B_wo)
    return x
```

```python
import re

class Asm:
    def __init__(self):
        self.lines = []
        self._uid = 0
    def __call__(self, s, *a):
        for ln in s.strip("\n").split("\n"):
            ln = ln.strip()
            if ln: self.lines.append(ln)
    def label(self, l): self.lines.append(l + ":")
    def uid(self, p="L"):
        self._uid += 1
        return f"{p}_{self._uid}"
    def text(self): return "\n".join(("" if l.endswith(":") or l.startswith(".") else "    ") + l for l in self.lines) + "\n"

def v(i, n=1): return f"v{i}" if n == 1 else f"v[{i}:{i+n-1}]"
def s(i, n=1): return f"s{i}" if n == 1 else f"s[{i}:{i+n-1}]"

_reg = re.compile(r"^(-|\|)?(abs\()?([vsa])(\d+|\[(\d+):(\d+)\])\)?\|?$")
def regs(op):
    op = op.strip()
    if op in ("vcc", "exec", "m0", "scc"): return {op}
    if op in ("vcc_lo", "vcc_hi"): return {"vcc"}
    if op in ("exec_lo", "exec_hi"): return {"exec"}
    m = _reg.match(op)
    if not m: return set()
    k = m.group(3)
    if m.group(5) is not None: return {f"{k}{i}" for i in range(int(m.group(5)), int(m.group(6)) + 1)}
    return {f"{k}{m.group(4)}"}

TRANS = ("v_exp_", "v_log_", "v_rcp_", "v_rsq_", "v_sqrt_", "v_sin_", "v_cos_")
class Ins:
    def __init__(self, txt):
        self.txt = txt
        t = txt.split(";")[0].strip()
        self.is_label = t.endswith(":")
        self.is_dir = t.startswith(".") and not self.is_label
        self.op = ""; self.w = set(); self.r = set(); self.kind = "other"
        self.mfma_pass = 0; self.srcC = set(); self.srcAB = set(); self.dpp = False; self.wide_store = set()
        self.sgpr_r = set(); self.target = None; self.ends = False; self.uncond = False
        if self.is_label or self.is_dir or not t: return
        parts = t.split(None, 1)
        op = self.op = parts[0]
        rest = parts[1] if len(parts) > 1 else ""
        ops = [o.strip() for o in re.split(r",\s*(?![^\[]*\])", rest)] if rest else []
        mods = ""
        if ops:
            sp = ops[-1].split(None, 1)
            ops[-1] = sp[0]
            if len(sp) > 1: mods = sp[1]
        self.mods = mods
        R = [regs(o) for o in ops]
        if op.startswith("v_mfma"):
            self.kind = "mfma"
            self.mfma_pass = 8 if "32x32x16" in op else 4 if "16x16x32" in op else None
            assert self.mfma_pass, op
            self.w = R[0]; self.srcAB = R[1] | R[2]; self.srcC = R[3]; self.r = self.srcAB | self.srcC
        elif op.startswith("v_"):
            self.kind = "valu"
            if op.startswith("v_cmpx"):
                self.w = R[0] | {"exec"}; self.r = set().union(*R[1:])
            elif op.startswith("v_cmp"):
                self.w = R[0]; self.r = set().union(*R[1:])
            elif op.startswith(("v_add_co", "v_sub_co", "v_addc_co", "v_subb_co", "v_subrev_co")):
                self.w = R[0] | R[1]; self.r = set().union(*R[2:])
            elif op.startswith("v_permlane") and "swap" in op:
                self.w = R[0] | R[1]; self.r = R[0] | R[1]
            elif op == "v_nop": pass
            else:
                self.w = R[0]; self.r = set().union(*R[1:]) if len(R) > 1 else set()
                if op.startswith(("v_fmac", "v_dot2c", "v_pk_fmac", "v_writelane")) : self.r |= R[0]
                if op.startswith("v_cndmask") and len(ops) == 3: self.r |= {"vcc"}
            if "row_" in mods or "quad_perm" in mods or "_dpp" in op or "wave_" in mods:
                self.dpp = True
                self.r |= self.w
            if "UNUSED_PRESERVE" in mods: self.r |= self.w
            self.trans = op.startswith(TRANS)
        elif op.startswith(("buffer_", "global_")):
            self.kind = "vmem"
            lds = bool(re.search(r"\blds\b", mods)) or "load_lds" in op
            if "load" in op and not lds:
                self.w = R[0]; self.r = set().union(*R[1:])
            elif lds:
                self.r = set().union(*R) | {"m0"}; self.lds_dma = True
            else:
                self.r = set().union(*R)
                if "atomic" in op and "sc0" in mods: self.w = R[0] if op.startswith("buffer") else R[0]
                if "x4" in op or "x3" in op:
                    self.wide_store = R[0] if op.startswith("buffer") else R[1]
        elif op.startswith("ds_"):
            self.kind = "ds"
            if op.startswith(("ds_read", "ds_bpermute", "ds_permute", "ds_swizzle")) or "_rtn" in op:
                self.w = R[0]; self.r = set().union(*R[1:])
            else:
                self.r = set().union(*R)
        elif op.startswith("s_"):
            self.kind = "salu"
            if op in ("s_endpgm",): self.ends = True
            elif op == "s_branch": self.target = ops[0]; self.uncond = True
            elif op.startswith("s_cbranch"): self.target = ops[0]
            elif op.startswith(("s_cmp", "s_waitcnt", "s_barrier", "s_nop", "s_sleep", "s_setprio", "s_bitcmp")):
                self.r = set().union(*R) if R else set()
            else:
                self.w = R[0] if R else set(); self.r = set().union(*R[1:]) if len(R) > 1 else set()
                if "saveexec" in op: self.w |= {"exec"}
        else:
            raise ValueError("unknown op " + txt)
    def states(self):
        if self.is_label or self.is_dir or not self.op: return 0
        if self.op == "s_nop": return int(self.txt.split(";")[0].split()[1], 0) + 1
        return 1

def isv(x): return x[0] in "va" and x != "vcc"
def need(p, c):
    n = 0
    if p.kind == "valu":
        pw_v = {x for x in p.w if isv(x)}
        pw_s = {x for x in p.w if not isv(x)}
        if c.kind == "mfma" and (pw_v & c.r): n = max(n, 2)
        if c.kind == "mfma" and "exec" in pw_s: n = max(n, 4)
        if c.kind == "valu":
            if c.dpp and (pw_v & c.r): n = max(n, 2)
            if c.dpp and "exec" in pw_s: n = max(n, 5)
            if c.op.startswith("v_permlane") and (pw_v & c.r): n = max(n, 2)
            if c.op.startswith(("v_readlane", "v_readfirstlane")) and (pw_v & c.r): n = max(n, 1)
            if c.op.startswith(("v_readlane", "v_readfirstlane", "v_writelane", "v_permlane")) and "exec" in pw_s: n = max(n, 4)
            if c.op.startswith(("v_readlane", "v_writelane")) and (pw_s & c.r): n = max(n, 4)
            if getattr(p, "trans", False) and (pw_v & c.r) and not getattr(c, "trans", False): n = max(n, 1)
            if (pw_s - {"exec"}) & c.r: n = max(n, 2)
            if ("sdwa" in p.op or "op_sel" in p.mods) and (pw_v & (c.r | c.w)): n = max(n, 1)
            if p.op.startswith("v_dot") and (pw_v & (c.r | c.w)):
                if not (c.op == p.op and not (pw_v & (c.r - c.w)) ): n = max(n, 3)
        if p.op.startswith("v_dot") and c.kind in ("vmem", "ds", "mfma") and (pw_v & c.r): n = max(n, 3)
        if c.kind == "vmem" and (pw_s & c.r): n = max(n, 5)
        if c.kind == "salu" and (pw_s & c.r): n = max(n, 1)
        if c.kind == "salu" and c.op.startswith("s_cbranch_vcc") and "vcc" in pw_s: n = max(n, 1)
    elif p.kind == "mfma":
        P = p.mfma_pass
        big = {4: 8, 8: 12}[P]
        if c.kind == "mfma":
            if p.w & c.srcAB: n = max(n, big)
            if p.w & c.srcC:
                if p.w == c.srcC and c.mfma_pass == P: pass
                else: n = max(n, {4: 6, 8: 10}[P])
            elif p.w & c.w: n = max(n, {4: 6, 8: 10}[P])
        elif c.kind == "valu":
            if p.w & (c.r | c.w): n = max(n, big)
            if p.srcC & c.w: n = max(n, {4: 3, 8: 7}[P])
        elif c.kind in ("vmem", "ds"):
            if p.w & (c.r | c.w): n = max(n, big)
            if p.srcC & c.w: n = max(n, {4: 3, 8: 7}[P])
    elif p.kind == "vmem":
        if p.wide_store and c.kind in ("valu", "mfma") and (p.wide_store & c.w): n = max(n, 2)
        elif p.wide_store and (p.wide_store & c.w): n = max(n, 1)
    elif p.kind == "salu":
        if "m0" in p.w and getattr(c, "lds_dma", False): n = max(n, 1)
        if "exec" in p.w and c.kind == "valu" and c.dpp: n = max(n, 1)
    return n

def fix_hazards(lines, verbose=False):
    ins = [Ins(l) for l in lines]
    lab = {i.txt.split(";")[0].strip()[:-1]: k for k, i in enumerate(ins) if i.is_label}
    preds = [[] for _ in ins]
    for k, i in enumerate(ins):
        if not (i.ends or i.uncond) and k + 1 < len(ins): preds[k + 1].append(k)
        if i.target is not None and i.target in lab: preds[lab[i.target]].append(k)
    st = [i.states() for i in ins]
    pad = [0] * len(ins)
    changed = True
    while changed:
        changed = False
        for k, c in enumerate(ins):
            if st[k] == 0 or c.op == "s_nop": continue
            short = 0
            stack = [(p, pad[k]) for p in preds[k]]
            seen = {}
            while stack:
                j, d = stack.pop()
                if seen.get(j, 99) <= d: continue
                seen[j] = d
                p = ins[j]
                if st[j]:
                    nd = need(p, c)
                    if nd > d: short = max(short, nd - d)
                d2 = d + st[j] + pad[j]
                if d2 < 12:
                    for q in preds[j]: stack.append((q, d2))
            if short:
                pad[k] += short; changed = True
                if verbose: print("pad", short, "before", lines[k])
    out = []
    for k, l in enumerate(lines):
        if pad[k]: out.append(f"s_nop {pad[k]-1}")
        out.append(l)
    return out
```

```python
from common import *
C_LDS = 16384 + 9216
L_SC, L_RAW, L_E = 0, 8192, 16384
def k_col(a, name, tin, tout, st):
    kernel_head(a, name)
    end = name + "_end"
    a("s_cmp_ge_u32 s2, 256"); a(f"s_cbranch_scc1 {end}")
    a(f"s_load_dwordx2 s[36:37], s[0:1], {KA_WS}")
    code_prefetch(a, name, end, 4, 31)
    wave_ids(a)
    table_srd(a, SRD_B, "ctab", 20480)
    C64, S64, N64, C32, S32, N32 = 64, 72, 80, 88, 96, 104
    DF, AC, TC, TS, IC, IS, VW, PK = 112, 16, 32, 40, 48, 56, 144, 152
    lst = a.uid("stage")
    a("v_lshlrev_b32 v6, 4, v1")
    a("s_cmp_ge_u32 s24, 4"); a(f"s_cbranch_scc1 {lst}")
    a("s_lshl_b32 s30, s24, 12")
    for i in range(4): a(f"buffer_load_dwordx4 {v(C64+4*i,4)}, v6, s[{SRD_B}:{SRD_B+3}], s30 offen offset:{i*1024}")
    a("s_mov_b32 s30, 16384")
    for i in range(4): a(f"buffer_load_dwordx4 {v(C32+4*i,4)}, v6, s[{SRD_B}:{SRD_B+3}], s30 offen offset:{i*1024}")
    a.label(lst)
    a("s_waitcnt lgkmcnt(0)")
    mk_srd(a, SRD_WS, 36, WS_SIZE)
    a("v_lshlrev_b32 v7, 3, v0")
    a("s_lshl_b32 s30, s2, 13")
    a(f"s_add_u32 s31, s30, {tin}")
    a(f"buffer_load_dwordx2 v[8:9], v7, s[{SRD_WS}:{SRD_WS+3}], s31 offen")
    a("s_add_u32 s31, s31, 4096")
    a(f"buffer_load_dwordx2 v[10:11], v7, s[{SRD_WS}:{SRD_WS+3}], s31 offen")
    a("v_lshlrev_b32 v12, 4, v0")
    for p in range(4):
        a(f"s_mov_b32 s31, {st + p*8192}")
        a(f"buffer_load_dwordx4 {v(DF+4*p,4)}, v12, s[{SRD_WS}:{SRD_WS+3}], s31 offen")
    lst2 = a.uid("stage2")
    a("s_cmp_ge_u32 s24, 4"); a(f"s_cbranch_scc1 {lst2}")
    a("s_lshl_b32 s31, s24, 11")
    a("s_add_u32 s31, s31, s30")
    a(f"s_add_u32 s31, s31, {WT}")
    a(f"buffer_load_dwordx4 {v(VW,4)}, v6, s[{SRD_WS}:{SRD_WS+3}], s31 offen")
    a(f"buffer_load_dwordx4 {v(VW+4,4)}, v6, s[{SRD_WS}:{SRD_WS+3}], s31 offen offset:1024")
    a("v_and_b32 v13, 15, v1")
    a("v_lshrrev_b32 v14, 4, v1")
    a("s_lshl_b32 s31, s24, 4")
    a("v_add_u32 v4, s31, v13")
    a("v_cvt_f32_u32 v4, v4")
    a(f"v_mul_f32 v4, {f32hex(1/2048)}, v4")
    a("v_lshlrev_b32 v5, 2, v14")
    a("v_cvt_f32_u32 v5, v5")
    for mt in range(2):
        for r in range(4):
            i = 4 * mt + r
            a(f"v_add_f32 v15, {f32hex(16*mt+r)}, v5")
            a("v_mul_f32 v15, v15, v4")
            a(f"v_cos_f32 v{TC+i}, v15")
            a(f"v_sin_f32 v{TS+i}, v15")
    a("v_lshl_add_u32 v4, v14, 2, s31")
    a("v_cvt_f32_u32 v4, v4")
    a("v_cvt_f32_u32 v5, v13")
    a(f"v_mul_f32 v5, {f32hex(1/2048)}, v5")
    for nt in range(2):
        if nt == 1: a(f"v_add_f32 v5, {f32hex(16/2048)}, v5")
        for r in range(4):
            i = 4 * nt + r
            a(f"v_add_f32 v15, {f32hex(r)}, v4")
            a("v_mul_f32 v15, v15, v5")
            a(f"v_cos_f32 v{IC+i}, v15")
            a(f"v_sin_f32 v{IS+i}, v15")
    for i in range(8):
        a(f"v_mul_f32 v{IC+i}, {f32hex(1/2048)}, v{IC+i}")
        a(f"v_mul_f32 v{IS+i}, {f32hex(1/2048)}, v{IS+i}")
    a("s_waitcnt vmcnt(8)")
    for i in range(8):
        a(f"v_xor_b32 v{N64+i}, 0x80008000, v{S64+i}")
        a(f"v_xor_b32 v{N32+i}, 0x80008000, v{S32+i}")
    a("s_waitcnt vmcnt(2)")
    lst3 = a.uid("stage3")
    a(f"s_branch {lst3}")
    a.label(lst2)
    a("s_waitcnt vmcnt(0)")
    a.label(lst3)
    a(f"ds_write_b64 v7, v[8:9] offset:{L_RAW}")
    a(f"ds_write_b64 v7, v[10:11] offset:{L_RAW+4096}")
    a(f"v_mov_b32 v15, {f32hex(1/512)}")
    a(f"v_mov_b32 v12, {f32hex(1e-5)}")
    for i in range(4):
        a(f"v_add_f32 v{DF+i}, v{DF+i}, v{DF+4+i}")
        a(f"v_add_f32 v{DF+8+i}, v{DF+8+i}, v{DF+12+i}")
    for i in range(4): a(f"v_add_f32 v{DF+i}, v{DF+i}, v{DF+8+i}")
    for i in range(4): a(f"v_fma_f32 v{DF+i}, v{DF+i}, v15, v12")
    for i in range(4): a(f"v_rsq_f32 v{DF+i}, v{DF+i}")
    lj = a.uid("jnz")
    a("s_cmp_lg_u32 s2, 0"); a(f"s_cbranch_scc1 {lj}")
    a("v_mov_b32 v8, v10"); a("v_mov_b32 v9, v11"); a("v_mov_b32 v10, 0"); a("v_mov_b32 v11, 0")
    a.label(lj)
    for p in range(2):
        for i in range(2):
            src = 8 + 2 * p + i
            a(f"v_lshlrev_b32 v{DF+4}, 16, v{src}")
            a(f"v_and_b32 v{DF+5}, 0xffff0000, v{src}")
            a(f"v_mul_f32 v{DF+4}, v{DF+4}, v{DF+2*i}")
            a(f"v_mul_f32 v{DF+5}, v{DF+5}, v{DF+2*i+1}")
            a(f"v_cvt_pk_bf16_f32 v{DF+6+2*p+i}, v{DF+4}, v{DF+5}")
        a(f"ds_write_b64 v7, {v(DF+6+2*p,2)} offset:{L_SC+4096*p}")
    a("s_waitcnt lgkmcnt(0)")
    a("s_barrier")
    a("s_cmp_ge_u32 s24, 4"); a(f"s_cbranch_scc1 {end}")
    a("v_bfe_u32 v4, v1, 2, 2")
    a("v_lshl_add_u32 v4, v14, 3, v4")
    a("v_lshlrev_b32 v4, 6, v4")
    a("v_and_b32 v5, 3, v1")
    a("v_lshl_or_b32 v4, v5, 3, v4")
    fr = lambda part, mt, ks: DF + 4 * (part * 4 + mt * 2 + ks)
    for mt in range(2):
        for ks in range(2):
            for part in range(2):
                o = L_SC + part * 4096 + ks * 2048 + mt * 32
                a(f"ds_read_b64_tr_b16 {v(fr(part,mt,ks),2)}, v4 offset:{o}")
                a(f"ds_read_b64_tr_b16 {v(fr(part,mt,ks)+2,2)}, v4 offset:{o+256}")
    M = "v_mfma_f32_16x16x32_bf16"
    acc = lambda part, mt: AC + 4 * (part * 2 + mt)
    def big(Cc, Sre, Sim, per):
        n = 0
        for mt in range(2):
            for ks in range(2):
                n += 1
                a(f"s_waitcnt lgkmcnt({(4-n)*2*per})")
                c0 = lambda p: "0" if ks == 0 else v(acc(p, mt), 4)
                a(f"{M} {v(acc(0,mt),4)}, {v(fr(0,mt,ks),4)}, {v(Cc+4*ks,4)}, {c0(0)}")
                a(f"{M} {v(acc(1,mt),4)}, {v(fr(1,mt,ks),4)}, {v(Cc+4*ks,4)}, {c0(1)}")
                a(f"{M} {v(acc(0,mt),4)}, {v(fr(1,mt,ks),4)}, {v(Sre+4*ks,4)}, {v(acc(0,mt),4)}")
                a(f"{M} {v(acc(1,mt),4)}, {v(fr(0,mt,ks),4)}, {v(Sim+4*ks,4)}, {v(acc(1,mt),4)}")
    big(C64, S64, N64, 2)
    T = DF
    T = 160
    def cmul(cr, ci, sign):
        for mt in range(2):
            for r in range(4):
                i = 4 * mt + r
                ar, ai = acc(0, mt) + r, acc(1, mt) + r
                a(f"v_mul_f32 v{T+i}, v{ar}, v{cr(i)}")
                a(f"v_mul_f32 v{T+8+i}, v{ai}, v{cr(i)}")
                a(f"v_fma_f32 v{T+i}, {'-' if sign>0 else ''}v{ai}, v{ci(i)}, v{T+i}")
                a(f"v_fma_f32 v{T+8+i}, {'' if sign>0 else '-'}v{ar}, v{ci(i)}, v{T+8+i}")
        for i in range(8): a(f"v_cvt_pk_bf16_f32 v{PK+i}, v{T+2*i}, v{T+2*i+1}")
    cmul(lambda i: TC + i, lambda i: TS + i, -1)
    Br, Bi = v(PK, 4), v(PK + 4, 4)
    for mt in range(2):
        a(f"{M} {v(acc(0,mt),4)}, {v(C32+4*mt,4)}, {Br}, 0")
        a(f"{M} {v(acc(1,mt),4)}, {v(C32+4*mt,4)}, {Bi}, 0")
    for mt in range(2):
        a(f"{M} {v(acc(0,mt),4)}, {v(S32+4*mt,4)}, {Bi}, {v(acc(0,mt),4)}")
        a(f"{M} {v(acc(1,mt),4)}, {v(N32+4*mt,4)}, {Br}, {v(acc(1,mt),4)}")
    a("s_waitcnt vmcnt(0)")
    WR, WI = TC, TS
    for i in range(8):
        a(f"v_lshlrev_b32 v{WR+i}, 16, v{VW+i}")
        a(f"v_and_b32 v{WI+i}, 0xffff0000, v{VW+i}")
    cmul(lambda i: WR + i, lambda i: WI + i, +1)
    for nt in range(2):
        a(f"{M} {v(acc(0,nt),4)}, {Br}, {v(C32+4*nt,4)}, 0")
        a(f"{M} {v(acc(1,nt),4)}, {Bi}, {v(C32+4*nt,4)}, 0")
    for nt in range(2):
        a(f"{M} {v(acc(0,nt),4)}, {Bi}, {v(N32+4*nt,4)}, {v(acc(0,nt),4)}")
        a(f"{M} {v(acc(1,nt),4)}, {Br}, {v(S32+4*nt,4)}, {v(acc(1,nt),4)}")
    a("v_mul_u32_u24 v4, 144, v13")
    a("v_lshl_add_u32 v4, v14, 3, v4")
    a("s_lshl_b32 s31, s24, 5")
    a("v_add_u32 v4, s31, v4")
    a("v_lshrrev_b32 v5, 2, v13")
    a("v_lshlrev_b32 v5, 3, v5")
    a("v_and_or_b32 v5, v13, 3, v5")
    a("v_mul_u32_u24 v5, 144, v5")
    a("v_lshl_add_u32 v5, v14, 4, v5")
    a("v_lshlrev_b32 v7, 6, v13")
    a("v_lshl_or_b32 v7, v14, 4, v7")
    a("s_lshl_b32 s31, s24, 10")
    a("v_add_u32 v7, s31, v7")
    cmul(lambda i: IC + i, lambda i: IS + i, +1)
    for part in range(2):
        for nt in range(2):
            a(f"ds_write_b64 v4, {v(PK+4*part+2*nt,2)} offset:{L_E + part*4608 + nt*16*144}")
    a(f"ds_read_b128 v[8:11], v7 offset:{L_RAW}")
    a(f"ds_read_b128 {v(VW,4)}, v7 offset:{L_RAW+4096}")
    a("s_waitcnt lgkmcnt(0)")
    a("s_barrier")
    for mt in range(2):
        for ks in range(2):
            for part in range(2):
                a(f"ds_read_b128 {v(fr(part,mt,ks),4)}, v5 offset:{L_E + part*4608 + mt*4*144 + ks*64}")
    big(C64, N64, S64, 1)
    lj = a.uid("jnz")
    a("s_cmp_lg_u32 s2, 0"); a(f"s_cbranch_scc1 {lj}")
    for i in range(8):
        a(f"v_mov_b32 v{AC+8+i}, v{AC+i}")
    for i in range(8):
        a(f"v_mov_b32 v{AC+i}, 0")
    a.label(lj)
    a(f"s_add_u32 s31, s30, {tout}")
    for part in range(2):
        raw = 8 if part == 0 else VW
        for i in range(4):
            a(f"v_lshlrev_b32 v{T}, 16, v{raw+i}")
            a(f"v_and_b32 v{T+1}, 0xffff0000, v{raw+i}")
            a(f"v_add_f32 v{T}, v{T}, v{AC+8*part+2*i}")
            a(f"v_add_f32 v{T+1}, v{T+1}, v{AC+8*part+2*i+1}")
            a(f"v_cvt_pk_bf16_f32 v{PK+4*part+i}, v{T}, v{T+1}")
        if part: a("s_add_u32 s31, s31, 4096")
        a(f"buffer_store_dwordx4 {v(PK+4*part,4)}, v7, s[{SRD_WS}:{SRD_WS+3}], s31 offen")
    a.label(end); a("s_endpgm")
    return kd(name, 176), C_LDS
```

```python
import numpy as np, math
from asmlib import *

KA_X, KA_WR, KA_WI, KA_BX, KA_WQKV, KA_WO, KA_OUT, KA_DBG, KA_WS = 0, 8, 16, 24, 32, 40, 48, 56, 64
T0, T1, T2, T3 = 0x000000, 0x200000, 0x400000, 0x600000
ST0, ST2 = 0x800000, 0x810000
WP, WOP, WOF, WT = 0x900000, 0xB00000, 0xB80000, 0xC00000
KV1, KV2 = 0x1000000, 0x1400000
O1, O2 = 0x1800000, 0x1A00000
X3 = 0x1C00000
FL1, FL2 = 0x2000000, 0x2020000
WS_SIZE = 0x2100000
STAMP = 0x2080000

SRD_WS, SRD_A, SRD_B, SRD_O = 8, 12, 16, 20
S_W, S_T, S_KH = 24, 25, 26

def bf16(x):
    u = int(np.float32(x).view(np.uint32)); return ((u + 0x7fff + ((u >> 16) & 1)) >> 16) & 0xffff
def f32hex(x): return "0x%08x" % int(np.float32(x).view(np.uint32))

def mk_srd(a, d, ptr, size):
    a(f"s_mov_b32 s{d}, s{ptr}")
    a(f"s_and_b32 s{d+1}, s{ptr+1}, 0xffff")
    a(f"s_mov_b32 s{d+2}, {size}")
    a(f"s_mov_b32 s{d+3}, 0x20000")

def table_srd(a, d, sym, size):
    l = a.uid("pc")
    a(f"s_getpc_b64 s[{d}:{d+1}]")
    a(f"s_add_u32 s{d}, s{d}, {sym}@rel32@lo+4")
    a(f"s_addc_u32 s{d+1}, s{d+1}, {sym}@rel32@hi+12")
    a(f"s_and_b32 s{d+1}, s{d+1}, 0xffff")
    a(f"s_mov_b32 s{d+2}, {size}")
    a(f"s_mov_b32 s{d+3}, 0x20000")

def code_prefetch(a, start, end, vtmp, vdst, nthreads=512):
    l = a.uid("pc")
    a(f"s_getpc_b64 s[6:7]")
    a.label(l)
    a(f"v_lshlrev_b32 v{vtmp}, 6, v0")
    a(f"v_min_u32 v{vtmp}, {end}-{l}-4, v{vtmp}")
    a(f"global_load_dword v{vdst}, v{vtmp}, s[6:7]")

def kernel_head(a, name):
    a(f".globl {name}")
    a(".p2align 8")
    a(f".type {name},@function")
    a.label(name)

def kd(name, vgpr, sgpr=64):
    acc = (vgpr + 3) // 4 * 4
    return f""".p2align 6
.amdhsa_kernel {name}
  .amdhsa_next_free_vgpr {vgpr}
  .amdhsa_next_free_sgpr {sgpr}
  .amdhsa_accum_offset {acc}
  .amdhsa_group_segment_fixed_size 0
  .amdhsa_kernarg_size 72
  .amdhsa_user_sgpr_count 2
  .amdhsa_user_sgpr_kernarg_segment_ptr 1
  .amdhsa_system_sgpr_workgroup_id_x 1
.end_amdhsa_kernel
"""

def wave_ids(a):
    a("v_lshrrev_b32 v4, 6, v0")
    a("v_and_b32 v1, 63, v0")
    a("v_readfirstlane_b32 s24, v4")
    a("v_and_b32 v2, 31, v0")
    a("v_bfe_u32 v3, v0, 5, 1")
    a("s_and_b32 s25, s24, 3")
    a("s_lshr_b32 s26, s24, 2")

def sigma(a, dst, src, tmp):
    a(f"v_and_b32 v{dst}, 3, v{src}")
    a(f"v_bfe_u32 v{tmp}, v{src}, 3, 2")
    a(f"v_lshl_or_b32 v{dst}, v{tmp}, 2, v{dst}")
    a(f"v_bfe_u32 v{tmp}, v{src}, 2, 1")
    a(f"v_lshl_or_b32 v{dst}, v{tmp}, 4, v{dst}")

def npsigma(m): return ((m >> 2) & 1) * 16 + (m >> 3) * 4 + (m & 3)
def nppi(h, i): return 8 * (i >> 2) + 4 * h + (i & 3)

def tables_text():
    s = ""
    for m in range(512): s += f".set ct{m}, {bf16(np.cos(2*np.pi*m/512)/16)}\n"
    s += """.altmacro
.macro em8 a,b,c,d,e,f,g,h
.short ct\\a,ct\\b,ct\\c,ct\\d,ct\\e,ct\\f,ct\\g,ct\\h
.endm
.p2align 8
ftab:
.set tc, 0
.rept 16
.set tk, 0
.rept 32
.set tl, 0
.rept 64
.set tj, (tc*32+(tl&31))>>1
.set tp, tl&1
.set tn, tk*16+(tl>>5)*8
.set ts, tj + (tj==0)*(-1)*(tp*128)
.set tb, tj*tn + tp*128 + (tj==0)*(-1)*(64-tp*128)
em8 %(tb&511),%((tb+ts)&511),%((tb+2*tj)&511),%((tb+2*tj+ts)&511),%((tb+4*tj)&511),%((tb+4*tj+ts)&511),%((tb+6*tj)&511),%((tb+6*tj+ts)&511)
.set tl, tl+1
.endr
.set tk, tk+1
.endr
.set tc, tc+1
.endr
.p2align 8
gtab:
.set tc, 0
.rept 16
.set tk, 0
.rept 32
.set tl, 0
.rept 64
.set tn, tc*32 + ((tl>>2)&1)*16 + ((tl>>3)&3)*4 + (tl&3)
.set tj, tk*8 + (tl>>5)*2
.set tb, tj*tn
.set t0, tb + (tj==0)*(-1)*64
.set t1, tb + 128 + (tj==0)*(-1)*((tn&1)*128-64)
em8 %(t0&511),%(t1&511),%((tb+tn)&511),%((tb+tn+128)&511),%((tb+4*tn)&511),%((tb+4*tn+128)&511),%((tb+5*tn)&511),%((tb+5*tn+128)&511)
.set tl, tl+1
.endr
.set tk, tk+1
.endr
.set tc, tc+1
.endr
.noaltmacro
"""
    vals = []
    for w in range(4):
        for fn in (np.cos, np.sin):
            for ks in range(2):
                for l in range(64):
                    k1 = 16 * w + (l & 15); g = l >> 4
                    for i in range(8):
                        n1 = 32 * ks + 8 * g + i
                        vals.append(bf16(fn(2 * np.pi * ((n1 * k1) % 64) / 64)))
    for fn in (np.cos, np.sin):
        for mt in range(2):
            for l in range(64):
                k2 = 16 * mt + (l & 15); g = l >> 4
                for i in range(8):
                    n2 = 16 * (i >> 2) + 4 * g + (i & 3)
                    vals.append(bf16(fn(2 * np.pi * ((n2 * k2) % 32) / 32)))
    s += ".p2align 8\nctab:\n"
    for i in range(0, len(vals), 16):
        s += ".long " + ",".join("0x%x" % (vals[i + 2 * k] | (vals[i + 2 * k + 1] << 16)) for k in range(8)) + "\n"
    return s
```

```python
from common import *
GT_LDS = 57600
L_X, L_IMG, L_SUM = 32768, 49152, 57344
V_AD = 8
V_RES = 16
V_FIN = 24
V_ACC = 32
V_AF = 48
V_B = 64

def tr_addr(a, dst, tmp, hrow_shift):
    a(f"v_bfe_u32 v{dst}, v1, 2, 2")
    a(f"v_lshl_add_u32 v{dst}, v3, {hrow_shift}, v{dst}")
    a(f"v_lshlrev_b32 v{dst}, 6, v{dst}")
    a(f"v_bfe_u32 v{tmp}, v1, 4, 1")
    a(f"v_lshl_or_b32 v{dst}, v{tmp}, 5, v{dst}")
    a(f"v_and_b32 v{tmp}, 3, v1")
    a(f"v_lshl_or_b32 v{dst}, v{tmp}, 3, v{dst}")

def gt(a, mode, use_sigma, shared_is_A, epi, a_base=0, b_base=0, res_base=None, out_base=0, st_base=0, npre=1):
    if mode == "rows":
        a("s_lshl_b32 s30, s24, 2")
        a("s_lshl_b32 s31, s28, 15")
        for i in range(4):
            a(f"s_add_u32 s32, s30, {i}")
            a("s_and_b32 s33, s32, 15")
            a("v_xor_b32 v4, s33, v1")
            a("v_lshlrev_b32 v4, 4, v4")
            a("s_lshl_b32 s32, s32, 10")
            a("s_mov_b32 m0, s32")
            a("s_add_u32 s33, s32, s31")
            a(f"buffer_load_dwordx4 v4, s[{SRD_A}:{SRD_A+3}], s33 offen lds")
    elif mode == "frag":
        a("v_lshlrev_b32 v4, 4, v1")
        a("s_lshl_b32 s32, s24, 12")
        a("s_lshl_b32 s31, s28, 15")
        a(f"s_add_u32 s31, s31, {a_base}")
        a("s_add_u32 s33, s31, s32")
        a("s_mov_b32 m0, s32")
        for i in range(4):
            a(f"buffer_load_dwordx4 v4, s[{SRD_A}:{SRD_A+3}], s33 offen offset:{i*1024} lds")
    elif mode == "kmaj":
        stride = a_base
        a("v_lshrrev_b32 v4, 2, v1")
        a(f"v_mul_u32_u24 v4, {stride}, v4")
        a("v_and_b32 v5, 3, v1")
        a("v_lshl_add_u32 v4, v5, 4, v4")
        a(f"s_mul_i32 s33, s24, {64*stride}")
        a("s_lshl_b32 s31, s28, 6")
        a("s_add_u32 s33, s33, s31")
        a("s_lshl_b32 s32, s24, 12")
        for i in range(4):
            a("s_mov_b32 m0, s32")
            a(f"buffer_load_dwordx4 v4, s[{SRD_A}:{SRD_A+3}], s33 offen lds")
            if i < 3:
                a(f"s_add_u32 s33, s33, {16*stride}")
                a("s_add_u32 s32, s32, 1024")
    a("s_lshl_b32 s34, s29, 2")
    a("s_add_u32 s34, s34, s25")
    a("s_lshl_b32 s33, s34, 15")
    a("s_lshl_b32 s32, s26, 14")
    a("s_add_u32 s33, s33, s32")
    if b_base: a(f"s_add_u32 s33, s33, {b_base}")
    a("v_lshlrev_b32 v5, 4, v1")
    for ks in range(16):
        if ks and ks % 4 == 0: a("s_add_u32 s33, s33, 4096")
        a(f"buffer_load_dwordx4 {v(V_B+4*ks,4)}, v5, s[{SRD_B}:{SRD_B+3}], s33 offen offset:{(ks%4)*1024}")
    nextra = 0
    if epi == "planar":
        a("s_lshl_b32 s35, s34, 17")
        a("s_lshl_b32 s32, s28, 6")
        a("s_add_u32 s35, s35, s32")
        a("s_lshl_b32 s32, s26, 4")
        a("s_add_u32 s35, s35, s32")
        a("v_lshlrev_b32 v6, 12, v2")
        a("v_lshl_or_b32 v6, v3, 5, v6")
        if res_base is not None:
            a(f"s_add_u32 s32, s35, {res_base}")
            a(f"buffer_load_dwordx4 {v(V_RES,4)}, v6, s[{SRD_WS}:{SRD_WS+3}], s32 offen")
            nextra = 1
        a(f"s_add_u32 s35, s35, {out_base}")
        a("v_lshlrev_b32 v7, 2, v1")
        a("v_mov_b32 v4, 0")
        a(f"ds_write_b32 v7, v4 offset:{L_SUM}")
    elif epi == "fragW":
        a("s_lshl_b32 s35, s28, 5")
        a("s_lshl_b32 s32, s34, 1")
        a("s_add_u32 s35, s35, s32")
        a("s_add_u32 s35, s35, s26")
        a("s_lshl_b32 s35, s35, 10")
        a(f"s_add_u32 s35, s35, {out_base}")
        a("v_lshlrev_b32 v6, 4, v1")
    elif epi == "fragO":
        a("s_lshl_b32 s35, s34, 5")
        a("s_lshl_b32 s32, s28, 1")
        a("s_add_u32 s35, s35, s32")
        a("s_add_u32 s35, s35, s26")
        a("s_lshl_b32 s35, s35, 10")
        a(f"s_add_u32 s35, s35, {out_base}")
        a("v_lshlrev_b32 v6, 4, v1")
    elif epi == "out":
        a("s_lshl_b32 s32, s28, 4")
        a("s_add_u32 s32, s32, s34")
        a("s_lshl_b32 s32, s32, 12")
        a("s_lshl_b32 s33, s26, 11")
        a("s_add_u32 s32, s32, s33")
        a(f"s_add_u32 s32, s32, {res_base}")
        a(f"buffer_load_dwordx4 {v(V_RES,4)}, v5, s[{SRD_WS}:{SRD_WS+3}], s32 offen")
        a(f"buffer_load_dwordx4 {v(V_RES+4,4)}, v5, s[{SRD_WS}:{SRD_WS+3}], s32 offen offset:1024")
        nextra = 2
        a("s_lshl_b32 s35, s28, 15")
        a("s_lshl_b32 s32, s34, 6")
        a("s_add_u32 s35, s35, s32")
        a("s_lshl_b32 s32, s26, 4")
        a("s_add_u32 s35, s35, s32")
        a("v_lshlrev_b32 v6, 10, v2")
        a("v_lshl_or_b32 v6, v3, 5, v6")
    row = 2
    if use_sigma:
        sigma(a, 7, 2, 4); row = 7
    if mode == "rows":
        a(f"v_and_b32 v4, 15, v{row}")
        a("v_xor_b32 v4, v4, v3")
        a("v_lshlrev_b32 v4, 4, v4")
        a(f"v_lshl_or_b32 v{V_AD}, v{row}, 10, v4")
        a("s_lshl_b32 s32, s26, 9")
        a(f"v_add_u32 v{V_AD}, s32, v{V_AD}")
        for b in range(1, 8): a(f"v_xor_b32 v{V_AD+b}, {b<<5}, v{V_AD}")
        rd = lambda ks, d: a(f"ds_read_b128 {v(d,4)}, v{V_AD+(ks&7)} offset:{(ks>>3)*256}")
        per = 1
    elif mode == "frag":
        a(f"v_lshl_or_b32 v4, v3, 5, v{row}")
        a("v_lshlrev_b32 v4, 4, v4")
        a("s_lshl_b32 s32, s26, 14")
        a(f"v_add_u32 v{V_AD}, s32, v4")
        rd = lambda ks, d: a(f"ds_read_b128 {v(d,4)}, v{V_AD} offset:{ks*1024}")
        per = 1
    else:
        tr_addr(a, V_AD, 4, 3)
        a("s_lshl_b32 s32, s26, 14")
        a(f"v_add_u32 v{V_AD}, s32, v{V_AD}")
        def rd(ks, d):
            a(f"ds_read_b64_tr_b16 {v(d,2)}, v{V_AD} offset:{ks*1024}")
            a(f"ds_read_b64_tr_b16 {v(d+2,2)}, v{V_AD} offset:{ks*1024+256}")
        per = 2
    a(f"s_waitcnt vmcnt({16+nextra}) lgkmcnt(0)")
    a("s_barrier")
    for ks in range(3): rd(ks, V_AF + 4 * ks)
    for ks in range(16):
        rem = min(2, 15 - ks)
        a(f"s_waitcnt vmcnt({15-ks+nextra}) lgkmcnt({rem*per})")
        A, B = v(V_AF + 4 * (ks & 3), 4), v(V_B + 4 * ks, 4)
        if not shared_is_A: A, B = B, A
        a(f"v_mfma_f32_32x32x16_bf16 {v(V_ACC,16)}, {A}, {B}, {'0' if ks == 0 else v(V_ACC,16)}")
        if ks + 3 < 16: rd(ks + 3, V_AF + 4 * ((ks + 3) & 3))
    l1, l2 = a.uid("kh1"), a.uid("khd")
    a("s_lshl_b32 s32, s24, 11")
    a("v_lshl_add_u32 v4, v1, 4, s32")
    a("v_xor_b32 v7, 0x2000, v4")
    a("s_cmp_eq_u32 s26, 1")
    a(f"s_cbranch_scc1 {l1}")
    a(f"ds_write_b128 v4, {v(V_ACC+8,4)} offset:{L_X}")
    a(f"ds_write_b128 v4, {v(V_ACC+12,4)} offset:{L_X+1024}")
    a(f"s_branch {l2}")
    a.label(l1)
    a(f"ds_write_b128 v4, {v(V_ACC,4)} offset:{L_X}")
    a(f"ds_write_b128 v4, {v(V_ACC+4,4)} offset:{L_X+1024}")
    for i in range(8): a(f"v_mov_b32 v{V_ACC+i}, v{V_ACC+8+i}")
    a.label(l2)
    a("s_waitcnt lgkmcnt(0)")
    a("s_barrier")
    a(f"ds_read_b128 {v(V_FIN,4)}, v7 offset:{L_X}")
    a(f"ds_read_b128 {v(V_FIN+4,4)}, v7 offset:{L_X+1024}")
    if epi == "planar" and res_base is not None:
        a("s_waitcnt vmcnt(0)")
        for i in range(4):
            a(f"v_lshlrev_b32 v4, 16, v{V_RES+i}")
            a(f"v_and_b32 v5, 0xffff0000, v{V_RES+i}")
            a(f"v_add_f32 v{V_ACC+2*i}, v{V_ACC+2*i}, v4")
            a(f"v_add_f32 v{V_ACC+2*i+1}, v{V_ACC+2*i+1}, v5")
    if epi == "out":
        a("s_waitcnt vmcnt(0)")
        for i in range(8): a(f"v_add_f32 v{V_ACC+i}, v{V_ACC+i}, v{V_RES+i}")
    a("s_waitcnt lgkmcnt(0)")
    for i in range(8): a(f"v_add_f32 v{V_FIN+i}, v{V_FIN+i}, v{V_ACC+i}")
    for i in range(4): a(f"v_cvt_pk_bf16_f32 v{V_AF+i}, v{V_FIN+2*i}, v{V_FIN+2*i+1}")
    srd = SRD_O if epi == "out" else SRD_WS
    a(f"buffer_store_dwordx4 {v(V_AF,4)}, v6, s[{srd}:{srd+3}], s35 offen")
    if epi == "planar":
        a("s_lshl_b32 s32, s25, 11")
        a("s_lshl_b32 s33, s26, 4")
        a("s_add_u32 s32, s32, s33")
        a("v_lshlrev_b32 v4, 6, v2")
        a("v_lshl_or_b32 v4, v3, 5, v4")
        a("v_add_u32 v4, s32, v4")
        a(f"ds_write_b128 v4, {v(V_AF,4)} offset:{L_IMG}")
        tr_addr(a, V_AD, 5, 3)
        a("s_lshl_b32 s32, s24, 10")
        a(f"v_add_u32 v{V_AD}, s32, v{V_AD}")
        a("s_or_b32 s32, s29, s24")
        a("v_or_b32 v5, s32, v3")
        a("v_cmp_eq_u32 vcc, 0, v5")
        a("v_mov_b32 v5, -1")
        a("v_mov_b32 v7, 0xffff0000")
        a("v_cndmask_b32 v5, v5, v7, vcc")
        a("s_waitcnt lgkmcnt(0)")
        a("s_barrier")
        a(f"ds_read_b64_tr_b16 {v(V_FIN,2)}, v{V_AD} offset:{L_IMG}")
        a(f"ds_read_b64_tr_b16 {v(V_FIN+2,2)}, v{V_AD} offset:{L_IMG+256}")
        a("v_lshlrev_b32 v4, 2, v2")
        a("s_waitcnt lgkmcnt(0)")
        a(f"v_and_b32 v{V_FIN}, v5, v{V_FIN}")
        a(f"v_dot2_f32_bf16 v7, v{V_FIN}, v{V_FIN}, 0")
        for i in range(1, 4): a(f"v_dot2_f32_bf16 v7, v{V_FIN+i}, v{V_FIN+i}, v7")
        a(f"ds_add_f32 v4, v7 offset:{L_SUM}")
        a("s_waitcnt lgkmcnt(0)")
        a("s_barrier")
        le = a.uid("pe")
        a("s_cmp_lg_u32 s24, 0")
        a(f"s_cbranch_scc1 {le}")
        a(f"ds_read_b32 v7, v4 offset:{L_SUM}")
        a("s_lshl_b32 s32, s29, 13")
        a("s_lshl_b32 s33, s28, 7")
        a("s_add_u32 s32, s32, s33")
        a(f"s_add_u32 s32, s32, {st_base}")
        a("s_waitcnt lgkmcnt(0)")
        a(f"buffer_store_dword v7, v4, s[{SRD_WS}:{SRD_WS+3}], s32 offen")
        a.label(le)

def p_ids(a):
    a("s_and_b32 s28, s2, 7")
    a("s_lshl_b32 s28, s28, 3")
    a("s_lshr_b32 s29, s2, 5")
    a("s_add_u32 s28, s28, s29")
    a("s_lshr_b32 s29, s2, 3")
    a("s_and_b32 s29, s29, 3")

def k_a1(a, name):
    kernel_head(a, name)
    end = name + "_end"
    a("s_cmp_ge_u32 s2, 256"); a(f"s_cbranch_scc1 {end}")
    a(f"s_load_dwordx2 s[4:5], s[0:1], {KA_X}")
    a(f"s_load_dwordx2 s[36:37], s[0:1], {KA_WS}")
    code_prefetch(a, name, end, 4, 31)
    wave_ids(a); p_ids(a)
    table_srd(a, SRD_B, "ftab", 0x80000)
    a("s_waitcnt lgkmcnt(0)")
    mk_srd(a, SRD_A, 4, 0x200000); mk_srd(a, SRD_WS, 36, WS_SIZE)
    gt(a, "rows", True, True, "planar", out_base=T0, st_base=ST0)
    a.label(end); a("s_endpgm")
    return kd(name, 128), GT_LDS

def k_p(a, name, layer):
    kernel_head(a, name)
    end = name + "_end"
    a("s_cmp_ge_u32 s2, 256"); a(f"s_cbranch_scc1 {end}")
    a(f"s_load_dwordx2 s[4:5], s[0:1], {KA_OUT}")
    a(f"s_load_dwordx2 s[36:37], s[0:1], {KA_WS}")
    code_prefetch(a, name, end, 4, 31)
    wave_ids(a); p_ids(a)
    a("s_waitcnt lgkmcnt(0)")
    mk_srd(a, SRD_WS, 36, WS_SIZE); mk_srd(a, SRD_A, 36, WS_SIZE); mk_srd(a, SRD_B, 36, WS_SIZE)
    if layer == 1:
        gt(a, "frag", True, True, "planar", a_base=O1, b_base=WOP, res_base=T1, out_base=T2, st_base=ST2)
    else:
        mk_srd(a, SRD_O, 4, 0x200000)
        gt(a, "frag", False, False, "out", a_base=O2, b_base=WOF, res_base=X3)
    a.label(end); a("s_endpgm")
    return kd(name, 128), GT_LDS

def k_prep(a, name):
    kernel_head(a, name)
    end = name + "_end"
    lwo, lwof, lwt = a.uid("wo"), a.uid("wof"), a.uid("wt")
    a("s_cmp_ge_u32 s2, 528"); a(f"s_cbranch_scc1 {end}")
    a(f"s_load_dwordx4 s[40:43], s[0:1], {KA_WQKV}")
    a(f"s_load_dwordx4 s[44:47], s[0:1], {KA_WR}")
    a(f"s_load_dwordx2 s[36:37], s[0:1], {KA_WS}")
    code_prefetch(a, name, end, 4, 31)
    wave_ids(a)
    table_srd(a, SRD_B, "ftab", 0x80000)
    a("s_waitcnt lgkmcnt(0)")
    mk_srd(a, SRD_WS, 36, WS_SIZE)
    a("s_cmp_ge_u32 s2, 272"); a(f"s_cbranch_scc1 {lwt}")
    a("s_cmp_ge_u32 s2, 256"); a(f"s_cbranch_scc1 {lwof}")
    a("s_cmp_ge_u32 s2, 192"); a(f"s_cbranch_scc1 {lwo}")
    mk_srd(a, SRD_A, 40, 512 * 3072)
    a("s_lshr_b32 s28, s2, 2"); a("s_and_b32 s29, s2, 3")
    gt(a, "kmaj", False, False, "fragW", a_base=3072, out_base=WP)
    a("s_endpgm")
    a.label(lwo)
    mk_srd(a, SRD_A, 42, 512 * 1024)
    a("s_sub_u32 s28, s2, 192"); a("s_and_b32 s29, s28, 3"); a("s_lshr_b32 s28, s28, 2")
    gt(a, "rows", False, True, "fragO", out_base=WOP)
    a("s_endpgm")
    a.label(lwof)
    mk_srd(a, SRD_A, 42, 512 * 1024)
    a("s_sub_u32 s28, s2, 256")
    a("v_lshrrev_b32 v4, 2, v1")
    a("v_lshlrev_b32 v4, 10, v4")
    a("v_and_b32 v5, 3, v1")
    a("v_lshl_add_u32 v4, v5, 4, v4")
    a("s_lshl_b32 s33, s24, 16")
    a("s_lshl_b32 s31, s28, 6")
    a("s_add_u32 s33, s33, s31")
    a("s_lshl_b32 s32, s24, 12")
    for i in range(4):
        a("s_mov_b32 m0, s32")
        a(f"buffer_load_dwordx4 v4, s[{SRD_A}:{SRD_A+3}], s33 offen lds")
        a("s_add_u32 s33, s33, 16384")
        a("s_add_u32 s32, s32, 1024")
    a("v_bfe_u32 v8, v1, 2, 2")
    a("v_lshl_add_u32 v8, v3, 2, v8")
    a("v_lshlrev_b32 v8, 6, v8")
    a("v_and_b32 v5, 1, v1")
    a("v_lshl_or_b32 v8, v5, 5, v8")
    a("v_bfe_u32 v5, v1, 4, 1")
    a("v_lshl_or_b32 v8, v5, 4, v8")
    a("v_bfe_u32 v5, v1, 1, 1")
    a("v_lshl_or_b32 v8, v5, 3, v8")
    a("s_lshl_b32 s32, s24, 12")
    a("v_add_u32 v8, s32, v8")
    a("s_lshl_b32 s33, s28, 15")
    a("s_add_u32 s33, s33, s32")
    a(f"s_add_u32 s33, s33, {WOF}")
    a("v_lshlrev_b32 v6, 4, v1")
    a("s_waitcnt vmcnt(0)")
    for i in range(4):
        a(f"ds_read_b64_tr_b16 {v(16+4*i,2)}, v8 offset:{i*1024}")
        a(f"ds_read_b64_tr_b16 {v(18+4*i,2)}, v8 offset:{i*1024+512}")
    a("s_waitcnt lgkmcnt(0)")
    for i in range(4):
        a(f"buffer_store_dwordx4 {v(16+4*i,4)}, v6, s[{SRD_WS}:{SRD_WS+3}], s33 offen offset:{i*1024}")
    a("s_endpgm")
    a.label(lwt)
    mk_srd(a, SRD_A, 44, 2048 * 514); mk_srd(a, SRD_O, 46, 2048 * 514)
    a("s_sub_u32 s28, s2, 272")
    a("v_mov_b32 v8, 0"); a("v_mov_b32 v9, 0"); a("v_mov_b32 v10, 0"); a("v_mov_b32 v11, 0")
    a("s_lshl_b32 s32, s28, 10")
    a(f"s_add_u32 s32, s32, {FL1}")
    a("v_lshlrev_b32 v6, 4, v1")
    a(f"buffer_store_dwordx4 v[8:11], v6, s[{SRD_WS}:{SRD_WS+3}], s32 offen")
    a("s_and_b32 s29, s28, 3")
    a("s_lshr_b32 s28, s28, 2")
    a("s_lshl_b32 s30, s28, 3"); a("s_add_u32 s30, s30, s24")
    a("s_lshr_b32 s31, s30, 7")
    a("s_lshl_b32 s31, s31, 4")
    a("s_and_b32 s32, s30, 15")
    a("s_add_u32 s31, s31, s32")
    a("s_bfe_u32 s32, s30, 0x30004")
    a("s_lshl_b32 s32, s32, 8")
    a("s_add_u32 s31, s31, s32")
    a("s_mul_i32 s31, s31, 514")
    a("s_lshl_b32 s32, s29, 6")
    a("v_add_u32 v4, s32, v1")
    a("v_cmp_eq_u32 vcc, 0, v4")
    a("v_mov_b32 v5, 256")
    a("v_cndmask_b32 v5, v4, v5, vcc")
    a("v_lshlrev_b32 v5, 1, v5")
    for r in range(4):
        a(f"buffer_load_ushort v{16+r}, v5, s[{SRD_A}:{SRD_A+3}], s31 offen")
        a(f"buffer_load_ushort v{20+r}, v5, s[{SRD_O}:{SRD_O+3}], s31 offen")
        if r < 3: a(f"s_add_u32 s31, s31, {64*514}")
    a("v_lshlrev_b32 v4, 13, v4")
    a("s_lshl_b32 s30, s30, 4")
    a(f"s_add_u32 s30, s30, {WT}")
    a("s_waitcnt vmcnt(0)")
    for r in range(4): a(f"v_lshl_or_b32 v{16+r}, v{20+r}, 16, v{16+r}")
    a(f"buffer_store_dwordx4 v[16:19], v4, s[{SRD_WS}:{SRD_WS+3}], s30 offen")
    a.label(end); a("s_endpgm")
    return kd(name, 128), GT_LDS
```

```python
from common import *
Q_LDS = 163840
L_BK, L_BV, L_BQ, L_BX, L_STG = 0, 32768, 65536, 98304, 131072
BIG = 2.0**100
MF = "v_mfma_f32_32x32x16_bf16"

def k_qat(a, name, layer):
    tin = T1 if layer == 1 else T3
    KV = KV1 if layer == 1 else KV2
    FL = FL1 if layer == 1 else FL2
    OB = O1 if layer == 1 else O2
    kernel_head(a, name)
    end = name + "_end"
    a("s_cmp_ge_u32 s2, 256"); a(f"s_cbranch_scc1 {end}")
    a(f"s_load_dwordx2 s[36:37], s[0:1], {KA_WS}")
    code_prefetch(a, name, end, 4, 31)
    wave_ids(a)
    if layer == 2: table_srd(a, SRD_B, "gtab", 0x80000)
    a("s_and_b32 s28, s2, 7"); a("s_lshl_b32 s28, s28, 1")
    a("s_lshr_b32 s29, s2, 7"); a("s_add_u32 s28, s28, s29")
    a("s_bfe_u32 s29, s2, 0x40003")
    a("s_lshl_b32 s27, s28, 2"); a("s_add_u32 s27, s27, s25")
    CD, CO = 96, 112
    VA = 128
    a("v_lshlrev_b32 v6, 4, v1")
    lld = a.uid("loader"); latt = a.uid("attn")
    a("s_waitcnt lgkmcnt(0)")
    mk_srd(a, SRD_WS, 36, WS_SIZE)
    W = f"s[{SRD_WS}:{SRD_WS+3}]"
    def masks():
        a("v_lshlrev_b32 v4, 2, v3")
        a("v_sub_u32 v4, v2, v4")
        a("v_cvt_f32_i32 v4, v4")
        a(f"v_mul_f32 v4, {f32hex(BIG)}, v4")
        for q in range(4):
            for r in range(4):
                c = 8 * q + r; i = 4 * q + r
                a(f"v_subrev_f32 v{CD+i}, {f32hex(c*BIG)}, v4")
                a(f"v_sub_f32 v{CO+i}, {f32hex((c-1)*BIG)}, v4")
                a(f"v_min_f32 v{CD+i}, 0, v{CD+i}")
                a(f"v_min_f32 v{CO+i}, 0, v{CO+i}")
    a("s_cmp_ge_u32 s24, 4"); a(f"s_cbranch_scc1 {lld}")
    a("v_lshrrev_b32 v7, 2, v1")
    a("v_lshlrev_b32 v7, 12, v7")
    a("v_and_b32 v4, 3, v1")
    a("v_lshl_or_b32 v7, v4, 4, v7")
    a("s_lshl_b32 s30, s27, 6")
    a(f"s_add_u32 s30, s30, {tin}")
    a("s_lshl_b32 s31, s24, 13")
    a(f"s_add_u32 s31, s31, {L_STG}")
    def dma(ks):
        a(f"s_add_u32 m0, s31, {(ks&7)*1024}")
        a(f"buffer_load_dwordx4 v7, {W}, s30 offen lds")
        if ks < 31: a("s_add_u32 s30, s30, 0x10000")
    for ks in range(8): dma(ks)
    a("v_bfe_u32 v8, v1, 2, 2")
    a("v_lshl_add_u32 v8, v3, 2, v8")
    a("v_lshlrev_b32 v8, 6, v8")
    a("v_bfe_u32 v4, v1, 4, 1")
    a("v_lshl_or_b32 v8, v4, 5, v8")
    a("v_and_b32 v4, 3, v1")
    a("v_lshl_or_b32 v8, v4, 3, v8")
    a("v_add_u32 v8, s31, v8")
    a("v_lshlrev_b32 v9, 16, v3")
    a("v_sub_u32 v9, v9, v3")
    a("v_or_b32 v9, 0xffff0000, v9")
    masks()
    AK, AV, BF = 32, 48, 64
    SS = 10
    def rdA(ks):
        a(f"ds_read_b64_tr_b16 {v(VA+4*ks,2)}, v8 offset:{(ks&7)*1024}")
        a(f"ds_read_b64_tr_b16 {v(VA+4*ks+2,2)}, v8 offset:{(ks&7)*1024+512}")
    def rdB(ks):
        b = BF + 8 * (ks & 1)
        a(f"ds_read_b128 {v(b,4)}, v6 offset:{L_BK+ks*1024}")
        a(f"ds_read_b128 {v(b+4,4)}, v6 offset:{L_BV+ks*1024}")
    a("s_waitcnt vmcnt(7)")
    rdA(0)
    a("s_barrier")
    rdB(0)
    for ks in range(32):
        if ks + 1 < 32:
            a(f"s_waitcnt vmcnt({min(6, 30-ks)})")
            rdA(ks + 1)
            if (ks + 1) % 8 == 0: a("s_barrier")
            rdB(ks + 1)
            a("s_waitcnt lgkmcnt(4)")
        else:
            a("s_waitcnt lgkmcnt(0)")
        if ks == 0:
            a(f"v_mov_b32 v12, v{VA}")
            a(f"v_and_b32 v{VA}, v9, v{VA}")
        b = BF + 8 * (ks & 1)
        A = v(VA + 4 * ks, 4)
        a(f"{MF} {v(AK,16)}, {v(b,4)}, {A}, {'0' if ks==0 else v(AK,16)}")
        if ks + 8 < 32: dma(ks + 8)
        a(f"{MF} {v(AV,16)}, {A}, {v(b+4,4)}, {'0' if ks==0 else v(AV,16)}")
        for i in range(4):
            c = "0" if ks == 0 and i < 2 else f"v{SS+(i&1)}"
            a(f"v_dot2_f32_bf16 v{SS+(i&1)}, v{VA+4*ks+i}, v{VA+4*ks+i}, {c}")
    a("v_add_f32 v10, v10, v11")
    a("v_mov_b32 v11, v10")
    a("v_permlane32_swap_b32 v10, v11")
    a("v_add_f32 v10, v10, v11")
    a(f"v_mov_b32 v11, {f32hex(1e-5)}")
    a(f"v_fmac_f32 v11, {f32hex(1/512)}, v10")
    a("v_rsq_f32 v10, v11")
    a("v_lshl_add_u32 v13, v2, 2, s31")
    a("ds_write_b32 v13, v10 offset:5120")
    a("v_lshl_add_u32 v13, v3, 4, s31")
    a("v_add_u32 v14, s31, v6")
    a("s_lshl_b32 s32, s29, 6"); a("s_add_u32 s32, s32, s27"); a("s_lshl_b32 s32, s32, 12")
    a(f"s_add_u32 s32, s32, {KV}")
    a("s_barrier")
    a("s_waitcnt lgkmcnt(0)")
    for q in range(4): a(f"ds_read_b128 {v(80+4*q,4)}, v13 offset:{5120+32*q}")
    AQ = 16
    def rdT(base, ks): a(f"ds_read_b128 {v(BF+4*(ks&3),4)}, v6 offset:{base+ks*1024}")
    for i in range(16): a(f"v_mul_f32 v{AK+i}, v{AK+i}, v10")
    for i in range(8): a(f"v_cvt_pk_bf16_f32 v{AK+i}, v{AK+2*i}, v{AK+2*i+1}")
    a(f"buffer_store_dwordx4 {v(AK,4)}, v6, {W}, s32 offen sc1")
    a(f"buffer_store_dwordx4 {v(AK+4,4)}, v6, {W}, s32 offen offset:1024 sc1")
    a(f"ds_write_b128 v14, {v(AK,4)}")
    a(f"ds_write_b128 v14, {v(AK+4,4)} offset:1024")
    a("s_waitcnt lgkmcnt(2)")
    for i in range(16): a(f"v_mul_f32 v{AV+i}, v{AV+i}, v{80+i}")
    for i in range(8): a(f"v_cvt_pk_bf16_f32 v{AV+i}, v{AV+2*i}, v{AV+2*i+1}")
    a(f"buffer_store_dwordx4 {v(AV,4)}, v6, {W}, s32 offen offset:2048 sc1")
    a(f"buffer_store_dwordx4 {v(AV+4,4)}, v6, {W}, s32 offen offset:3072 sc1")
    a(f"ds_write_b128 v14, {v(AV,4)} offset:2048")
    a(f"ds_write_b128 v14, {v(AV+4,4)} offset:3072")
    a(f"v_add_u32 v15, {L_BQ}, v6")
    def tile(acc, base_reg, mid=None):
        rd = lambda ks: a(f"ds_read_b128 {v(BF+4*(ks&3),4)}, v{base_reg} offset:{ks*1024}")
        for ks in range(3): rd(ks)
        for ks in range(32):
            a(f"s_waitcnt lgkmcnt({min(2,31-ks)})")
            a(f"{MF} {v(acc,16)}, {v(BF+4*(ks&3),4)}, {v(VA+4*ks,4)}, {'0' if ks==0 else v(acc,16)}")
            if ks + 3 < 32: rd(ks + 3)
            if mid and ks == 20: mid()
    def publish():
        a("s_lshl_b32 s33, s28, 4"); a("s_add_u32 s33, s33, s29")
        a("s_lshl_b32 s33, s33, 9")
        a("s_lshl_b32 s34, s24, 6")
        a("s_add_u32 s33, s33, s34")
        a(f"s_add_u32 s33, s33, {FL + 16*512 + 256}")
        a(f"v_mul_u32_u24 v4, {16*512-256}, v1")
        a("v_add_u32 v5, s28, v1")
        a("v_cmp_gt_u32 vcc, 15, v5")
        a("s_and_b64 vcc, vcc, 3")
        a("v_mov_b32 v5, 1")
        a("s_waitcnt vmcnt(0)")
        a("s_and_saveexec_b64 s[34:35], vcc")
        a(f"buffer_store_dword v5, v4, {W}, s33 offen sc1")
        a("s_mov_b64 exec, s[34:35]")
    tile(AQ, 15, publish)
    a(f"v_mul_f32 v10, {f32hex(0.25*math.log2(math.e))}, v10")
    VQ = 4
    for i in range(16): a(f"v_mul_f32 v{AQ+i}, v{AQ+i}, v10")
    for i in range(8): a(f"v_cvt_pk_bf16_f32 v{AQ+i}, v{AQ+2*i}, v{AQ+2*i+1}")
    a(f"ds_write_b128 v14, {v(AQ+4,4)} offset:4096")
    if layer == 2:
        a(f"v_mov_b32 v{VA}, v12")
        a(f"v_add_u32 v15, {L_BX}, v6")
        a("s_barrier")
        tile(AK, 15)
        a("s_lshl_b32 s32, s27, 4"); a("s_add_u32 s32, s32, s29"); a("s_lshl_b32 s32, s32, 12")
        a(f"s_add_u32 s32, s32, {X3}")
        for q in range(4): a(f"buffer_store_dwordx4 {v(AK+4*q,4)}, v6, {W}, s32 offen offset:{q*1024}")
    a("s_waitcnt lgkmcnt(0)")
    a("s_barrier")
    a(f"s_branch {latt}")
    a.label(lld)
    a("s_lshl_b32 s30, s29, 15")
    a("s_lshl_b32 s31, s25, 11")
    a("s_add_u32 s30, s30, s31")
    def chunk(b):
        a(f"s_add_u32 s32, s30, {WP + 16*32768 + b*8192}")
        a(f"s_add_u32 m0, s31, {L_BK + b*8192}")
        a(f"buffer_load_dwordx4 v6, {W}, s32 offen lds")
        a(f"buffer_load_dwordx4 v6, {W}, s32 offen offset:1024 lds")
        a(f"s_add_u32 s32, s30, {WP + 32*32768 + b*8192}")
        a(f"s_add_u32 m0, s31, {L_BV + b*8192}")
        a(f"buffer_load_dwordx4 v6, {W}, s32 offen lds")
        a(f"buffer_load_dwordx4 v6, {W}, s32 offen offset:1024 lds")
    def full(srd, gbase, lbase):
        for b in range(4):
            a(f"s_add_u32 s32, s30, {gbase + b*8192}")
            a(f"s_add_u32 m0, s31, {lbase + b*8192}")
            a(f"buffer_load_dwordx4 v6, {srd}, s32 offen lds")
            a(f"buffer_load_dwordx4 v6, {srd}, s32 offen offset:1024 lds")
    chunk(0); chunk(1)
    masks()
    a("s_waitcnt vmcnt(4)"); a("s_barrier")
    chunk(2)
    a("s_waitcnt vmcnt(4)"); a("s_barrier")
    chunk(3)
    a("s_waitcnt vmcnt(4)"); a("s_barrier")
    full(W, WP, L_BQ)
    a("s_waitcnt vmcnt(8)"); a("s_barrier")
    if layer == 2:
        full(f"s[{SRD_B}:{SRD_B+3}]", 0, L_BX)
        a("s_waitcnt vmcnt(8)")
    else:
        a("s_waitcnt vmcnt(0)")
    a("s_barrier")
    if layer == 2:
        a("s_waitcnt vmcnt(0)"); a("s_barrier")
    lnh = a.uid("nohalo"); lpoll = a.uid("poll")
    a("s_lshl_b32 s32, s28, 1"); a("s_add_u32 s32, s32, s25")
    a("s_cmp_lt_u32 s32, 4"); a(f"s_cbranch_scc1 {lnh}")
    a("s_lshl_b32 s33, s28, 4"); a("s_add_u32 s33, s33, s29"); a("s_lshl_b32 s33, s33, 9")
    a("s_lshl_b32 s34, s25, 7"); a("s_add_u32 s33, s33, s34")
    a(f"s_add_u32 s33, s33, {FL}")
    a("v_and_b32 v4, 1, v1"); a("v_lshlrev_b32 v4, 6, v4")
    a("s_mov_b32 s35, 0x40000")
    a.label(lpoll)
    a(f"buffer_load_dword v5, v4, {W}, s33 offen sc1")
    a("s_sub_u32 s35, s35, 1")
    a("s_waitcnt vmcnt(0)")
    a("v_cmp_eq_u32 vcc, 0, v5")
    a("s_cmp_eq_u32 s35, 0")
    a(f"s_cbranch_scc1 {lpoll}_x")
    a(f"s_cbranch_vccnz {lpoll}")
    a.label(lpoll + "_x")
    a("s_lshl_b32 s32, s32, 1")
    a("s_sub_u32 s32, s32, 8")
    a("s_lshl_b32 s33, s29, 6"); a("s_add_u32 s32, s32, s33"); a("s_lshl_b32 s32, s32, 12")
    a(f"s_add_u32 s32, s32, {KV}")
    for i in range(8):
        if i == 4: a("s_add_u32 s32, s32, 4096")
        a(f"buffer_load_dwordx4 {v(32+4*i,4)}, v6, {W}, s32 offen offset:{(i&3)*1024} sc1")
    a("s_lshl_b32 s33, s25, 13")
    a("v_add_u32 v4, s33, v6")
    for i in range(8):
        a(f"s_waitcnt vmcnt({7-i})")
        a(f"ds_write_b128 v4, {v(32+4*i,4)} offset:{i*1024}")
    a.label(lnh)
    a("s_waitcnt lgkmcnt(0)")
    a("s_barrier")
    a("s_lshl_b32 s31, s25, 13")
    a(f"s_add_u32 s31, s31, {L_STG}")
    a("v_add_u32 v14, s31, v6")
    a("ds_read_b128 v[16:19], v14 offset:4096")
    a.label(latt)
    QF = v(16, 4)
    KF, VB, S0, S1, PP, OA, CM = 128, 164, 32, 48, 64, 80, 180
    a("s_lshl_b32 s32, s26, 10")
    a("v_add_u32 v8, s32, v6")
    a("v_and_b32 v9, 47, v1")
    a("v_lshlrev_b32 v9, 4, v9")
    a("s_lshl_b32 s32, s26, 8")
    a("s_add_u32 s32, s32, 2048")
    a("v_add_u32 v9, s32, v9")
    for b in range(9):
        a(f"s_add_u32 s32, s25, {8-b}")
        a("s_lshl_b32 s33, s32, 12")
        a("s_lshl_b32 s34, s32, 13")
        a(f"s_add_u32 s34, s34, {L_STG-65536}")
        a("s_cmp_ge_u32 s32, 8")
        a(f"s_cselect_b32 s{40+b}, s34, s33")
        a(f"v_add_u32 v4, s{40+b}, v8")
        a(f"ds_read_b128 {v(KF+4*b,4)}, v4")
    a("s_add_u32 s30, s27, 1"); a("s_min_u32 s30, s30, 9")
    for i in range(16): a(f"v_mov_b32 v{VB+i}, 0x3f803f80")
    a("s_mov_b32 s38, 0xffff"); a("s_mov_b32 s39, 0xffff")
    a("s_waitcnt lgkmcnt(0)")
    S = lambda b: S0 if b % 2 == 0 else S1
    ld1 = a.uid("d1"); ld2 = a.uid("d2")
    a(f"{MF} {v(S0,16)}, {v(KF,4)}, {QF}, {v(CD,16)}")
    for b in range(9):
        if b + 1 < 9:
            a(f"{MF} {v(S(b+1),16)}, {v(KF+4*(b+1),4)}, {QF}, {v(CO,16) if b+1==8 else '0'}")
        for i in range(8):
            if b == 0 and i == 0: a(f"v_max_f32 v10, v{S0}, v{S0+1}")
            else: a(f"v_max3_f32 v10, v{S(b)+2*i}, v{S(b)+2*i+1}, v10")
        if b + 1 < 9:
            a(f"s_cmp_eq_u32 s30, {b+1}"); a(f"s_cbranch_scc1 {ld1}")
    a.label(ld1)
    def rdV(b):
        a(f"v_add_u32 v4, s{40+b}, v9")
        a("s_mov_b64 exec, s[38:39]")
        a(f"ds_read_b128 {v(VB+8*(b&1),4)}, v4")
        a(f"ds_read_b128 {v(VB+8*(b&1)+4,4)}, v4 offset:1024")
        a("s_mov_b64 exec, -1")
    rdV(0)
    a("v_mov_b32 v11, v10")
    a("v_permlane32_swap_b32 v10, v11")
    a("v_max_f32 v10, v10, v11")
    for i in range(16): a(f"v_sub_f32 v{CD+i}, v{CD+i}, v10")
    a(f"{MF} {v(S0,16)}, {v(KF,4)}, {QF}, {v(CD,16)}")
    for i in range(16): a(f"v_sub_f32 v{CM+i}, 0, v10")
    for i in range(16): a(f"v_sub_f32 v{CO+i}, v{CO+i}, v10")
    for b in range(9):
        if b + 1 < 9:
            a(f"{MF} {v(S(b+1),16)}, {v(KF+4*(b+1),4)}, {QF}, {v(CO,16) if b+1==8 else v(CM,16)}")
            rdV(b + 1)
        for i in range(16): a(f"v_exp_f32 v{S(b)+i}, v{S(b)+i}")
        for i in range(8): a(f"v_cvt_pk_bf16_f32 v{PP+i}, v{S(b)+2*i}, v{S(b)+2*i+1}")
        a(f"s_waitcnt lgkmcnt({2 if b+1<9 else 0})")
        vb = VB + 8 * (b & 1)
        a(f"{MF} {v(OA,16)}, {v(vb,4)}, {v(PP,4)}, {'0' if b==0 else v(OA,16)}")
        a(f"{MF} {v(OA,16)}, {v(vb+4,4)}, {v(PP+4,4)}, {v(OA,16)}")
        if b + 1 < 9:
            a(f"s_cmp_eq_u32 s30, {b+1}"); a(f"s_cbranch_scc1 {ld2}")
    a.label(ld2)
    a("s_lshl_b32 s32, s27, 5"); a("s_lshl_b32 s33, s29, 1"); a("s_add_u32 s32, s32, s33")
    a("s_add_u32 s32, s32, s26"); a("s_lshl_b32 s32, s32, 10")
    a(f"s_add_u32 s32, s32, {OB}")
    a(f"v_rcp_f32 v10, v{OA+8}")
    for i in range(8): a(f"v_mul_f32 v{OA+i}, v{OA+i}, v10")
    for i in range(4): a(f"v_cvt_pk_bf16_f32 v{OA+i}, v{OA+2*i}, v{OA+2*i+1}")
    a(f"buffer_store_dwordx4 {v(OA,4)}, v6, {W}, s32 offen")
    a.label(end); a("s_endpgm")
    return kd(name, 256), Q_LDS
```

```python
import sys
from common import *
from gt import *
from col import *
from qat import *
HDR = open("interleave_layers__spectral_gfnet__sliding_block__prompt.s.ref").read().split("; Override launch")[0]
def build(path):
    a = Asm()
    ks = []
    ks.append(("prep_kernel", 528) + k_prep(a, "prep_kernel"))
    ks.append(("a1_kernel", 256) + k_a1(a, "a1_kernel"))
    ks.append(("c1_kernel", 256) + k_col(a, "c1_kernel", T0, T1, ST0))
    ks.append(("q1_kernel", 256) + k_qat(a, "q1_kernel", 1))
    ks.append(("p1_kernel", 256) + k_p(a, "p1_kernel", 1))
    ks.append(("c2_kernel", 256) + k_col(a, "c2_kernel", T2, T3, ST2))
    ks.append(("q2_kernel", 256) + k_qat(a, "q2_kernel", 2))
    ks.append(("p2_kernel", 256) + k_p(a, "p2_kernel", 2))
    a.lines = fix_hazards(a.lines)
    s = HDR
    for n, g, d, lds in ks: s += f"; @launch kernel={n} grid=({g},1,1) block=(512,1,1) lds={lds}\n"
    s += '.amdgcn_target "amdgcn-amd-amdhsa--gfx950"\n.text\n' + a.text()
    s += '.section .rodata,"a"\n'
    for n, g, d, lds in ks: s += d
    s += tables_text()
    open(path, "w").write(s)
if __name__ == "__main__":
    build(sys.argv[1] if len(sys.argv) > 1 else "interleave_layers__spectral_gfnet__sliding_block__prompt.s")
```

```python
import re

class Asm:
    def __init__(self):
        self.lines = []
        self._uid = 0
    def __call__(self, s, *a):
        for ln in s.strip("\n").split("\n"):
            ln = ln.strip()
            if ln: self.lines.append(ln)
    def label(self, l): self.lines.append(l + ":")
    def uid(self, p="L"):
        self._uid += 1
        return f"{p}_{self._uid}"
    def text(self): return "\n".join(("" if l.endswith(":") or l.startswith(".") else "    ") + l for l in self.lines) + "\n"

def v(i, n=1): return f"v{i}" if n == 1 else f"v[{i}:{i+n-1}]"
def s(i, n=1): return f"s{i}" if n == 1 else f"s[{i}:{i+n-1}]"

_reg = re.compile(r"^(-|\|)?(abs\()?([vsa])(\d+|\[(\d+):(\d+)\])\)?\|?$")
def regs(op):
    op = op.strip()
    if op in ("vcc", "exec", "m0", "scc"): return {op}
    if op in ("vcc_lo", "vcc_hi"): return {"vcc"}
    if op in ("exec_lo", "exec_hi"): return {"exec"}
    m = _reg.match(op)
    if not m: return set()
    k = m.group(3)
    if m.group(5) is not None: return {f"{k}{i}" for i in range(int(m.group(5)), int(m.group(6)) + 1)}
    return {f"{k}{m.group(4)}"}

TRANS = ("v_exp_", "v_log_", "v_rcp_", "v_rsq_", "v_sqrt_", "v_sin_", "v_cos_")
class Ins:
    def __init__(self, txt):
        self.txt = txt
        t = txt.split(";")[0].strip()
        self.is_label = t.endswith(":")
        self.is_dir = t.startswith(".") and not self.is_label
        self.op = ""; self.w = set(); self.r = set(); self.kind = "other"
        self.mfma_pass = 0; self.srcC = set(); self.srcAB = set(); self.dpp = False; self.wide_store = set()
        self.sgpr_r = set(); self.target = None; self.ends = False; self.uncond = False
        if self.is_label or self.is_dir or not t: return
        parts = t.split(None, 1)
        op = self.op = parts[0]
        rest = parts[1] if len(parts) > 1 else ""
        ops = [o.strip() for o in re.split(r",\s*(?![^\[]*\])", rest)] if rest else []
        mods = ""
        if ops:
            sp = ops[-1].split(None, 1)
            ops[-1] = sp[0]
            if len(sp) > 1: mods = sp[1]
        self.mods = mods
        R = [regs(o) for o in ops]
        if op.startswith("v_mfma"):
            self.kind = "mfma"
            self.mfma_pass = 8 if "32x32x16" in op else 4 if "16x16x32" in op else 2 if "4x4x4" in op else None
            assert self.mfma_pass, op
            self.w = R[0]; self.srcAB = R[1] | R[2]; self.srcC = R[3]; self.r = self.srcAB | self.srcC
        elif op.startswith("v_"):
            self.kind = "valu"
            if op.startswith("v_cmpx"):
                self.w = R[0] | {"exec"}; self.r = set().union(*R[1:])
            elif op.startswith("v_cmp"):
                self.w = R[0]; self.r = set().union(*R[1:])
            elif op.startswith(("v_add_co", "v_sub_co", "v_addc_co", "v_subb_co", "v_subrev_co")):
                self.w = R[0] | R[1]; self.r = set().union(*R[2:])
            elif op.startswith("v_permlane") and "swap" in op:
                self.w = R[0] | R[1]; self.r = R[0] | R[1]
            elif op == "v_nop": pass
            else:
                self.w = R[0]; self.r = set().union(*R[1:]) if len(R) > 1 else set()
                if op.startswith(("v_fmac", "v_dot2c", "v_pk_fmac", "v_writelane")) : self.r |= R[0]
                if op.startswith("v_cndmask") and len(ops) == 3: self.r |= {"vcc"}
            if "row_" in mods or "quad_perm" in mods or "_dpp" in op or "wave_" in mods:
                self.dpp = True
                self.r |= self.w
            if "UNUSED_PRESERVE" in mods: self.r |= self.w
            self.trans = op.startswith(TRANS)
        elif op.startswith(("buffer_", "global_")):
            self.kind = "vmem"
            lds = bool(re.search(r"\blds\b", mods)) or "load_lds" in op
            if "load" in op and not lds:
                self.w = R[0]; self.r = set().union(*R[1:])
            elif lds:
                self.r = set().union(*R) | {"m0"}; self.lds_dma = True
            else:
                self.r = set().union(*R)
                if "atomic" in op and "sc0" in mods: self.w = R[0] if op.startswith("buffer") else R[0]
                if "x4" in op or "x3" in op:
                    self.wide_store = R[0] if op.startswith("buffer") else R[1]
        elif op.startswith("ds_"):
            self.kind = "ds"
            if op.startswith(("ds_read", "ds_bpermute", "ds_permute", "ds_swizzle")) or "_rtn" in op:
                self.w = R[0]; self.r = set().union(*R[1:])
            else:
                self.r = set().union(*R)
        elif op.startswith("s_"):
            self.kind = "salu"
            if op in ("s_endpgm", "s_setpc_b64"): self.ends = True
            elif op == "s_call_b64": self.target = ops[1]; self.w = R[0]
            elif op == "s_branch": self.target = ops[0]; self.uncond = True
            elif op.startswith("s_cbranch"): self.target = ops[0]
            elif op.startswith(("s_cmp", "s_waitcnt", "s_barrier", "s_nop", "s_sleep", "s_setprio", "s_bitcmp")):
                self.r = set().union(*R) if R else set()
            else:
                self.w = R[0] if R else set(); self.r = set().union(*R[1:]) if len(R) > 1 else set()
                if "saveexec" in op: self.w |= {"exec"}
        else:
            raise ValueError("unknown op " + txt)
    def states(self):
        if self.is_label or self.is_dir or not self.op: return 0
        if self.op == "s_nop": return int(self.txt.split(";")[0].split()[1], 0) + 1
        return 1

def isv(x): return x[0] in "va" and x != "vcc"
def need(p, c):
    n = 0
    if p.kind == "valu":
        pw_v = {x for x in p.w if isv(x)}
        pw_s = {x for x in p.w if not isv(x)}
        if c.kind == "mfma" and (pw_v & c.r): n = max(n, 2)
        if c.kind == "mfma" and "exec" in pw_s: n = max(n, 4)
        if c.kind == "valu":
            if c.dpp and (pw_v & c.r): n = max(n, 2)
            if c.dpp and "exec" in pw_s: n = max(n, 5)
            if c.op.startswith("v_permlane") and (pw_v & c.r): n = max(n, 2)
            if c.op.startswith(("v_readlane", "v_readfirstlane")) and (pw_v & c.r): n = max(n, 1)
            if c.op.startswith(("v_readlane", "v_readfirstlane", "v_writelane", "v_permlane")) and "exec" in pw_s: n = max(n, 4)
            if c.op.startswith(("v_readlane", "v_writelane")) and (pw_s & c.r): n = max(n, 4)
            if getattr(p, "trans", False) and (pw_v & c.r) and not getattr(c, "trans", False): n = max(n, 1)
            if (pw_s - {"exec"}) & c.r: n = max(n, 2)
            if ("sdwa" in p.op or "op_sel" in p.mods) and (pw_v & (c.r | c.w)): n = max(n, 1)
            if p.op.startswith("v_dot") and (pw_v & (c.r | c.w)):
                if not (c.op == p.op and not (pw_v & (c.r - c.w)) ): n = max(n, 3)
        if p.op.startswith("v_dot") and c.kind in ("vmem", "ds", "mfma") and (pw_v & c.r): n = max(n, 3)
        if c.kind == "vmem" and (pw_s & c.r): n = max(n, 5)
        if c.kind == "salu" and (pw_s & c.r): n = max(n, 1)
        if c.kind == "salu" and c.op.startswith("s_cbranch_vcc") and "vcc" in pw_s: n = max(n, 1)
    elif p.kind == "mfma":
        P = p.mfma_pass
        big = {2: 5, 4: 8, 8: 12}[P]
        if c.kind == "mfma":
            if p.w & c.srcAB: n = max(n, big)
            if p.w & c.srcC:
                if p.w == c.srcC and c.mfma_pass == P: n = max(n, 2 if P == 2 else 0)
                else: n = max(n, {2: 4, 4: 6, 8: 10}[P])
            elif p.w & c.w: n = max(n, {2: 4, 4: 6, 8: 10}[P])
        elif c.kind == "valu":
            if p.w & (c.r | c.w): n = max(n, big)
            if p.srcC & c.w: n = max(n, {2: 1, 4: 3, 8: 7}[P])
        elif c.kind in ("vmem", "ds"):
            if p.w & (c.r | c.w): n = max(n, big)
            if p.srcC & c.w: n = max(n, {2: 1, 4: 3, 8: 7}[P])
    elif p.kind == "vmem":
        if p.wide_store and c.kind in ("valu", "mfma") and (p.wide_store & c.w): n = max(n, 2)
        elif p.wide_store and (p.wide_store & c.w): n = max(n, 1)
    elif p.kind == "salu":
        if "m0" in p.w and getattr(c, "lds_dma", False): n = max(n, 1)
        if "exec" in p.w and c.kind == "valu" and c.dpp: n = max(n, 1)
    return n

def fix_hazards(lines, verbose=False):
    ins = [Ins(l) for l in lines]
    lab = {i.txt.split(";")[0].strip()[:-1]: k for k, i in enumerate(ins) if i.is_label}
    preds = [[] for _ in ins]
    for k, i in enumerate(ins):
        if not (i.ends or i.uncond) and k + 1 < len(ins): preds[k + 1].append(k)
        if i.target is not None and i.target in lab: preds[lab[i.target]].append(k)
    st = [i.states() for i in ins]
    pad = [0] * len(ins)
    changed = True
    while changed:
        changed = False
        for k, c in enumerate(ins):
            if st[k] == 0 or c.op == "s_nop": continue
            short = 0
            stack = [(p, pad[k]) for p in preds[k]]
            seen = {}
            while stack:
                j, d = stack.pop()
                if seen.get(j, 99) <= d: continue
                seen[j] = d
                p = ins[j]
                if st[j]:
                    nd = need(p, c)
                    if nd > d: short = max(short, nd - d)
                d2 = d + st[j] + pad[j]
                if d2 < 12:
                    for q in preds[j]: stack.append((q, d2))
            if short:
                pad[k] += short; changed = True
                if verbose: print("pad", short, "before", lines[k])
    out = []
    for k, l in enumerate(lines):
        if pad[k]: out.append(f"s_nop {pad[k]-1}")
        out.append(l)
    return out
```

```python
import numpy as np, math, os
from asmlib import *

KA_X, KA_WR, KA_WI, KA_BX, KA_WQKV, KA_WO, KA_OUT, KA_DBG, KA_WS = 0, 8, 16, 24, 32, 40, 48, 56, 64
T0, T1, T2, T3 = 0x000000, 0x200000, 0x400000, 0x600000
ST0, ST2 = 0x800000, 0x810000
WP, WOP, WOF, WT = 0x900000, 0xB00000, 0xB80000, 0xC00000
KV1, KV2 = 0x1000000, 0x1400000
O1, O2 = 0x1800000, 0x1A00000
X3 = 0x1C00000
FL1, FL2 = 0x2000000, 0x2020000
WS_SIZE = 0x3000000
STAMP = 0x2100000

SRD_WS, SRD_A, SRD_B, SRD_O = 8, 12, 16, 20
S_W, S_T, S_KH = 24, 25, 26

def bf16(x):
    u = int(np.float32(x).view(np.uint32)); return ((u + 0x7fff + ((u >> 16) & 1)) >> 16) & 0xffff
def f32hex(x): return "0x%08x" % int(np.float32(x).view(np.uint32))

def mk_srd(a, d, ptr, size):
    a(f"s_mov_b32 s{d}, s{ptr}")
    a(f"s_and_b32 s{d+1}, s{ptr+1}, 0xffff")
    a(f"s_mov_b32 s{d+2}, {size}")
    a(f"s_mov_b32 s{d+3}, 0x20000")

def table_srd(a, d, sym, size):
    l = a.uid("pc")
    a(f"s_getpc_b64 s[{d}:{d+1}]")
    a(f"s_add_u32 s{d}, s{d}, {sym}@rel32@lo+4")
    a(f"s_addc_u32 s{d+1}, s{d+1}, {sym}@rel32@hi+12")
    a(f"s_and_b32 s{d+1}, s{d+1}, 0xffff")
    a(f"s_mov_b32 s{d+2}, {size}")
    a(f"s_mov_b32 s{d+3}, 0x20000")

def code_prefetch(a, start, end, vtmp, vdst, nthreads=512):
    l = a.uid("pc")
    a(f"s_getpc_b64 s[6:7]")
    a.label(l)
    a(f"v_lshlrev_b32 v{vtmp}, 6, v0")
    a(f"v_min_u32 v{vtmp}, {end}-{l}-4, v{vtmp}")
    a(f"global_load_dword v{vdst}, v{vtmp}, s[6:7]")

def kernel_head(a, name):
    a(f".globl {name}")
    a(".p2align 8")
    a(f".type {name},@function")
    a.label(name)

def kd(name, vgpr, sgpr=64):
    if int(os.environ.get('KDEBUG','0')): sgpr = 100
    acc = (vgpr + 3) // 4 * 4
    return f""".p2align 6
.amdhsa_kernel {name}
  .amdhsa_next_free_vgpr {vgpr}
  .amdhsa_next_free_sgpr {sgpr}
  .amdhsa_accum_offset {acc}
  .amdhsa_group_segment_fixed_size 0
  .amdhsa_kernarg_size 72
  .amdhsa_user_sgpr_count 2
  .amdhsa_user_sgpr_kernarg_segment_ptr 1
  .amdhsa_system_sgpr_workgroup_id_x 1
.end_amdhsa_kernel
"""

def wave_ids(a):
    a("v_lshrrev_b32 v4, 6, v0")
    a("v_and_b32 v1, 63, v0")
    a("v_readfirstlane_b32 s24, v4")
    a("v_and_b32 v2, 31, v0")
    a("v_bfe_u32 v3, v0, 5, 1")
    a("s_and_b32 s25, s24, 3")
    a("s_lshr_b32 s26, s24, 2")

def sigma(a, dst, src, tmp):
    a(f"v_and_b32 v{dst}, 3, v{src}")
    a(f"v_bfe_u32 v{tmp}, v{src}, 3, 2")
    a(f"v_lshl_or_b32 v{dst}, v{tmp}, 2, v{dst}")
    a(f"v_bfe_u32 v{tmp}, v{src}, 2, 1")
    a(f"v_lshl_or_b32 v{dst}, v{tmp}, 4, v{dst}")

def npsigma(m): return ((m >> 2) & 1) * 16 + (m >> 3) * 4 + (m & 3)
def nppi(h, i): return 8 * (i >> 2) + 4 * h + (i & 3)

def tables_text():
    s = ""
    for m in range(512): s += f".set ct{m}, {bf16(np.cos(2*np.pi*m/512)/16)}\n"
    s += """.altmacro
.macro em8 a,b,c,d,e,f,g,h
.short ct\\a,ct\\b,ct\\c,ct\\d,ct\\e,ct\\f,ct\\g,ct\\h
.endm
.p2align 8
ftab:
.set tc, 0
.rept 16
.set tk, 0
.rept 32
.set tl, 0
.rept 64
.set tj, (tc*32+(tl&31))>>1
.set tp, tl&1
.set tn, tk*16+(tl>>5)*8
.set ts, tj + (tj==0)*(-1)*(tp*128)
.set tb, tj*tn + tp*128 + (tj==0)*(-1)*(64-tp*128)
em8 %(tb&511),%((tb+ts)&511),%((tb+2*tj)&511),%((tb+2*tj+ts)&511),%((tb+4*tj)&511),%((tb+4*tj+ts)&511),%((tb+6*tj)&511),%((tb+6*tj+ts)&511)
.set tl, tl+1
.endr
.set tk, tk+1
.endr
.set tc, tc+1
.endr
.p2align 8
gtab:
.set tc, 0
.rept 16
.set tk, 0
.rept 32
.set tl, 0
.rept 64
.set tn, tc*32 + ((tl>>2)&1)*16 + ((tl>>3)&3)*4 + (tl&3)
.set tj, tk*8 + (tl>>5)*2
.set tb, tj*tn
.set t0, tb + (tj==0)*(-1)*64
.set t1, tb + 128 + (tj==0)*(-1)*((tn&1)*128-64)
em8 %(t0&511),%(t1&511),%((tb+tn)&511),%((tb+tn+128)&511),%((tb+4*tn)&511),%((tb+4*tn+128)&511),%((tb+5*tn)&511),%((tb+5*tn+128)&511)
.set tl, tl+1
.endr
.set tk, tk+1
.endr
.set tc, tc+1
.endr
.noaltmacro
"""
    vals = []
    for w in range(4):
        for fn in (np.cos, np.sin):
            for ks in range(2):
                for l in range(64):
                    k1 = 16 * w + (l & 15); g = l >> 4
                    for i in range(8):
                        n1 = 32 * ks + 8 * g + i
                        vals.append(bf16(fn(2 * np.pi * ((n1 * k1) % 64) / 64)))
    for fn in (np.cos, np.sin):
        for mt in range(2):
            for l in range(64):
                k2 = 16 * mt + (l & 15); g = l >> 4
                for i in range(8):
                    n2 = 16 * (i >> 2) + 4 * g + (i & 3)
                    vals.append(bf16(fn(2 * np.pi * ((n2 * k2) % 32) / 32)))
    s += ".p2align 8\nctab:\n"
    for i in range(0, len(vals), 16):
        s += ".long " + ",".join("0x%x" % (vals[i + 2 * k] | (vals[i + 2 * k + 1] << 16)) for k in range(8)) + "\n"
    return s

import os
DEBUG = int(os.environ.get("KDEBUG", "0"))
_kidx = [0]
def stamp_init(a):
    if not DEBUG: return
    for i in range(16): a(f"s_mov_b64 s[{64+2*i}:{65+2*i}], 0")
    a("s_mov_b64 s[96:97], 0")
    a("s_memrealtime s[92:93]")
    a("s_memrealtime s[64:65]")
MODE = os.environ.get("KMODE", "")
def stamp(a, i, mode=""):
    if mode != MODE and not (MODE and i < 6 and mode == ""): return
    if DEBUG: a(f"s_memrealtime s[{64+2*i}:{65+2*i}]")
def cstamp(a, i):
    if DEBUG and MODE == "clk": a(f"s_memtime s[{64+2*i}:{65+2*i}]")
def stamp_out(a, kidx):
    if not DEBUG: return
    a("s_mov_b64 exec, -1")
    a("s_waitcnt vmcnt(0) lgkmcnt(0)")
    a("s_memrealtime s[90:91]")
    a("s_memrealtime s[94:95]")
    a("s_waitcnt lgkmcnt(0)")
    for i in range(16): a(f"v_writelane_b32 v8, s{64+2*i}, {i}")
    a("v_writelane_b32 v8, s96, 16")
    a("v_writelane_b32 v8, s97, 17")
    a(f"s_add_u32 s98, s2, {kidx*1024}")
    a("s_lshl_b32 s98, s98, 3"); a("s_add_u32 s98, s98, s24"); a("s_lshl_b32 s98, s98, 7")
    a(f"s_add_u32 s98, s98, {STAMP}")
    a("v_lshlrev_b32 v9, 2, v1")
    a("s_mov_b64 exec, 0x3ffff")
    a(f"buffer_store_dword v8, v9, s[{SRD_WS}:{SRD_WS+3}], s98 offen")
```

```python
from common import *
import common
X3B = 0x1C00000
M16 = "v_mfma_f32_16x16x32_bf16"
MF = "v_mfma_f32_32x32x16_bf16"
W = f"s[{SRD_WS}:{SRD_WS+3}]"

def lane_ids(a):
    wave_ids(a)
    a("v_lshlrev_b32 v6, 4, v1")
    a("v_and_b32 v13, 15, v1")
    a("v_lshrrev_b32 v14, 4, v1")

def g16(a, RB, rd, per, regs_is_A, acc, zero_init, FB, nbuf=8, vmwait=None):
    steps = [(ks, t) for ks in range(16) for t in range(2)]
    depth = min(nbuf - 1, 15 // per)
    for i in range(depth): rd(*steps[i], FB + 4 * (i % nbuf))
    for i, (ks, t) in enumerate(steps):
        rem = min(depth - 1, len(steps) - 1 - i)
        w = f"lgkmcnt({rem*per})"
        if vmwait is not None and t == 0: w = f"vmcnt({vmwait(ks)}) " + w
        a(f"s_waitcnt {w}")
        A, B = v(RB + 4 * ks, 4), v(FB + 4 * (i % nbuf), 4)
        if not regs_is_A: A, B = B, A
        c = "0" if (zero_init and ks == 0) else v(acc + 4 * t, 4)
        a(f"{M16} {v(acc+4*t,4)}, {A}, {B}, {c}")
        if i + depth < len(steps): rd(*steps[i + depth], FB + 4 * ((i + depth) % nbuf))

def planar_pre(a, vwr, vrd, vsum, vfac, vout, s_scr, s_cg, tmp, l_sum):
    a(f"v_lshlrev_b32 v{vwr}, 5, v13")
    a(f"v_lshl_or_b32 v{vwr}, v14, 3, v{vwr}")
    a(f"v_add_u32 v{vwr}, s{s_scr}, v{vwr}")
    a(f"v_bfe_u32 v{vrd}, v1, 2, 2")
    a(f"v_lshl_add_u32 v{vrd}, v14, 3, v{vrd}")
    a(f"v_lshlrev_b32 v{vrd}, 5, v{vrd}")
    a(f"v_and_b32 v{tmp}, 3, v1")
    a(f"v_lshl_or_b32 v{vrd}, v{tmp}, 3, v{vrd}")
    a(f"v_add_u32 v{vrd}, s{s_scr}, v{vrd}")
    a(f"v_lshlrev_b32 v{vsum}, 5, v2")
    a("s_lshl_b32 s32, s24, 2")
    a(f"s_add_u32 s32, s32, {l_sum}")
    a(f"v_add_u32 v{vsum}, s32, v{vsum}")
    a(f"s_or_b32 s32, s{s_cg}, s24")
    a(f"v_or_b32 v{tmp}, s32, v14")
    a(f"v_min_u32 v{tmp}, 1, v{tmp}")
    a(f"v_cvt_f32_u32 v{vfac}, v{tmp}")
    a(f"v_lshlrev_b32 v{vout}, 6, v13")
    a(f"v_lshl_or_b32 v{vout}, v14, 4, v{vout}")

def planar_epi(a, acc, vwr, vrd, vsum, vfac, vout, T, s_out, flags):
    for st in range(2):
        x = acc + 4 * st
        a(f"v_cvt_pk_bf16_f32 v{T+2*st}, v{x}, v{x+1}")
        a(f"v_cvt_pk_bf16_f32 v{T+2*st+1}, v{x+2}, v{x+3}")
        a(f"ds_write_b64 v{vwr}, {v(T+2*st,2)} offset:{st*512}")
    for st in range(2):
        x = acc + 4 * st
        a(f"v_mul_f32 v{T+4+st}, v{x}, v{vfac}")
        a(f"v_mul_f32 v{T+4+st}, v{T+4+st}, v{x}")
        for r in range(1, 4): a(f"v_fmac_f32 v{T+4+st}, v{x+r}, v{x+r}")
    a("s_waitcnt lgkmcnt(0)")
    a(f"ds_read_b64_tr_b16 {v(T,2)}, v{vrd}")
    a(f"ds_read_b64_tr_b16 {v(T+2,2)}, v{vrd} offset:128")
    a(f"v_permlane16_swap_b32 v{T+4}, v{T+5}")
    a(f"v_add_f32 v{T+4}, v{T+4}, v{T+5}")
    a(f"v_mov_b32 v{T+5}, v{T+4}")
    a(f"v_permlane32_swap_b32 v{T+4}, v{T+5}")
    a(f"v_add_f32 v{T+4}, v{T+4}, v{T+5}")
    a(f"ds_write_b32 v{vsum}, v{T+4}")
    a("s_waitcnt lgkmcnt(1)")
    a(f"buffer_store_dwordx4 {v(T,4)}, v{vout}, {W}, s{s_out} offen {flags}")
    a("s_waitcnt lgkmcnt(0)")
    a("s_barrier")

def stats_out(a, l_sum, s_cg, s_blk, st_base, T):
    lsk = a.uid("sk")
    a("s_cmp_lg_u32 s24, 0"); a(f"s_cbranch_scc1 {lsk}")
    a("v_lshlrev_b32 v5, 5, v2")
    a("v_lshl_or_b32 v5, v3, 4, v5")
    a(f"v_add_u32 v5, {l_sum}, v5")
    a(f"ds_read_b128 {v(T+8,4)}, v5")
    a("v_lshlrev_b32 v4, 2, v2")
    a(f"s_lshl_b32 s32, s{s_cg}, 13"); a(f"s_lshl_b32 s33, s{s_blk}, 7"); a("s_add_u32 s32, s32, s33")
    a(f"s_add_u32 s32, s32, {st_base}")
    a("s_waitcnt lgkmcnt(0)")
    a(f"v_add_f32 v{T+8}, v{T+8}, v{T+9}")
    a(f"v_add_f32 v{T+10}, v{T+10}, v{T+11}")
    a(f"v_add_f32 v{T+8}, v{T+8}, v{T+10}")
    a(f"v_mov_b32 v5, v{T+8}")
    a(f"v_permlane32_swap_b32 v{T+8}, v5")
    a(f"v_add_f32 v5, v{T+8}, v5")
    a(f"buffer_store_dword v5, v4, {W}, s32 offen sc1")
    a.label(lsk)

def tables2_text():
    s = ""
    for m in range(512): s += f".set ct{m}, {bf16(np.cos(2*np.pi*m/512)/16)}\n"
    old = common.tables_text()
    g0 = old.index(".p2align 8\ngtab:");
    s += """.altmacro
.macro em8 a,b,c,d,e,f,g,h
.short ct\\a,ct\\b,ct\\c,ct\\d,ct\\e,ct\\f,ct\\g,ct\\h
.endm
"""
    s += old[g0:]
    vals = []
    for w in range(4):
        regs = np.zeros((32, 64))
        for l in range(64):
            g = l >> 4; m = l & 15
            for t in range(2):
                for r in range(4):
                    ph = 2 * np.pi * ((16 * t + 4 * g + r) * (16 * w + m)) / 2048
                    regs[4 * t + r, l] = np.cos(ph); regs[8 + 4 * t + r, l] = np.sin(ph)
                    ph = 2 * np.pi * ((16 * t + m) * (16 * w + 4 * g + r)) / 2048
                    regs[16 + 4 * t + r, l] = np.cos(ph) / 2048; regs[24 + 4 * t + r, l] = np.sin(ph) / 2048
        for q in range(8):
            for l in range(64):
                for e in range(4): vals.append(int(np.float32(regs[4 * q + e, l]).view(np.uint32)))
    for i in range(0, len(vals), 8):
        s += ".long " + ",".join("0x%x" % x for x in vals[i:i + 8]) + "\n"
    return s
CTAB_SIZE = 20480 + 32768
```

```python
from common2 import *
INIT_LDS = 65536 + 8192 + 1024
L_X, L_W, L_SCR, L_SUM, L_WOF = 0, 32768, 65536, 73728, 0
def gen_f(a, RB):
    X, Y = 32, 40
    a("s_lshl_b32 s32, s34, 4")
    a("v_add_u32 v4, s32, v13")
    a("v_lshrrev_b32 v5, 1, v4")
    a("v_and_b32 v7, 1, v4")
    a("v_cmp_eq_u32 vcc, 0, v5")
    a("v_lshlrev_b32 v8, 8, v7")
    a("v_cndmask_b32 v5, v5, v8, vcc")
    a("v_lshlrev_b32 v7, 7, v7")
    a("v_mov_b32 v8, 64")
    a("v_cndmask_b32 v7, v7, v8, vcc")
    a("v_lshlrev_b32 v8, 3, v14")
    a("v_mad_u32_u24 v7, v5, v8, v7")
    a("v_lshlrev_b32 v9, 5, v5")
    a(f"v_mov_b32 v10, {f32hex(1/512)}")
    a("v_and_b32 v8, 511, v9"); a("v_cvt_f32_u32 v8, v8"); a("v_mul_f32 v8, v8, v10")
    a("v_cos_f32 v11, v8")
    a("v_add_u32 v9, v9, v7")
    a("v_add_f32 v11, v11, v11")
    for R, st in ((X, 7), (Y, 9)):
        for i in range(8):
            a(f"v_and_b32 v8, 511, v{st}")
            a("v_cvt_f32_u32 v8, v8")
            a("v_mul_f32 v8, v8, v10")
            a(f"v_cos_f32 v{R+i}, v8")
            if i < 7: a(f"v_add_u32 v{st}, v{st}, v5")
        for i in range(8): a(f"v_mul_f32 v{R+i}, {f32hex(1/16)}, v{R+i}")
    for ks in range(16):
        R = X if ks % 2 == 0 else Y
        O = Y if ks % 2 == 0 else X
        if ks >= 2:
            for i in range(8): a(f"v_fma_f32 v{R+i}, v11, v{O+i}, -v{R+i}")
        for i in range(4): a(f"v_cvt_pk_bf16_f32 v{RB+4*ks+i}, v{R+2*i}, v{R+2*i+1}")

def k_init(a, name):
    kernel_head(a, name)
    end = name + "_end"
    laux = a.uid("aux")
    a("s_cmp_ge_u32 s2, 512"); a(f"s_cbranch_scc1 {end}")
    stamp_init(a)
    a(f"s_load_dwordx2 s[4:5], s[0:1], {KA_X}")
    a(f"s_load_dwordx4 s[40:43], s[0:1], {KA_WQKV}")
    a(f"s_load_dwordx4 s[44:47], s[0:1], {KA_WR}")
    a(f"s_load_dwordx2 s[36:37], s[0:1], {KA_WS}")
    code_prefetch(a, name, end, 4, 31)
    lane_ids(a)
    a("s_cmp_ge_u32 s2, 256"); a(f"s_cbranch_scc1 {laux}")
    a("s_and_b32 s28, s2, 7"); a("s_lshl_b32 s28, s28, 3"); a("s_lshr_b32 s29, s2, 5"); a("s_add_u32 s28, s28, s29")
    a("s_bfe_u32 s29, s2, 0x20003")
    RB, FB, ACC, T = 64, 32, 16, 24
    a("s_lshl_b32 s34, s29, 3"); a("s_add_u32 s34, s34, s24")
    a("s_add_u32 s48, s29, s24"); a("s_and_b32 s48, s48, 3")
    def rows_dma(srd, lbase, sblk_sgpr):
        a("s_lshl_b32 s30, s48, 3")
        a(f"s_lshl_b32 s31, s{sblk_sgpr}, 15")
        for i in range(8):
            a(f"s_add_u32 s32, s30, {i}")
            a("s_and_b32 s35, s32, 15")
            a("v_xor_b32 v4, s35, v1")
            a("v_lshlrev_b32 v4, 4, v4")
            a("s_lshl_b32 s32, s32, 10")
            a("s_add_u32 s35, s32, s31")
            a(f"s_add_u32 m0, s32, {lbase}")
            a(f"buffer_load_dwordx4 v4, s[{srd}:{srd+3}], s35 offen lds")
    lhi, lgo = a.uid("hi"), a.uid("go")
    a("s_sub_u32 s38, s28, 48")
    a("s_mov_b32 s56, s29")
    a("s_lshl_b32 s49, s28, 7"); a(f"s_add_u32 s49, s49, {WT}")
    a("s_cmp_ge_u32 s24, 4"); a(f"s_cbranch_scc1 {lhi}")
    a("s_waitcnt lgkmcnt(0)")
    stamp(a, 1)
    lt0, lt1 = a.uid("t0"), a.uid("t1")
    a("s_cmp_lg_u32 s24, 0"); a(f"s_cbranch_scc1 {lt1}")
    a("s_and_b32 s32, s2, 7"); a("s_lshr_b32 s33, s2, 3")
    a("s_cmp_ge_u32 s32, 6"); a(f"s_cbranch_scc1 {lt0}")
    mk_srd(a, SRD_A, 40, 512 * 3072)
    a("v_lshrrev_b32 v4, 2, v1"); a("v_mul_u32_u24 v4, 3072, v4")
    a("v_and_b32 v5, 3, v1"); a("v_lshl_add_u32 v4, v5, 7, v4")
    a(f"s_mul_i32 s33, s33, {16*3072}"); a("s_lshl_b32 s32, s32, 9"); a("s_add_u32 s33, s33, s32")
    a(f"buffer_load_dword v26, v4, s[{SRD_A}:{SRD_A+3}], s33 offen")
    a(f"s_branch {lt1}")
    a.label(lt0)
    mk_srd(a, SRD_A, 42, 512 * 1024)
    a("v_lshlrev_b32 v4, 7, v1")
    a("s_sub_u32 s32, s32, 6"); a("s_lshl_b32 s32, s32, 18"); a("s_lshl_b32 s33, s33, 13"); a("s_add_u32 s33, s33, s32")
    a(f"buffer_load_dword v26, v4, s[{SRD_A}:{SRD_A+3}], s33 offen")
    a.label(lt1)
    lt2 = a.uid("t2")
    a("s_cmp_lg_u32 s24, 1"); a(f"s_cbranch_scc1 {lt2}")
    mk_srd(a, SRD_A, 4, 0x200000)
    a("v_lshlrev_b32 v4, 7, v1")
    a("s_and_b32 s32, s2, 7"); a("s_lshl_b32 s32, s32, 18"); a("s_lshr_b32 s33, s2, 3"); a("s_lshl_b32 s33, s33, 13"); a("s_add_u32 s33, s33, s32")
    a(f"buffer_load_dword v26, v4, s[{SRD_A}:{SRD_A+3}], s33 offen")
    a.label(lt2)
    mk_srd(a, 52, 44, 2048 * 514); mk_srd(a, SRD_B, 46, 2048 * 514)
    a("s_lshl_b32 s32, s56, 6")
    a("v_add_u32 v24, s32, v1")
    a("v_cmp_eq_u32 vcc, 0, v24")
    a("v_mov_b32 v25, 256")
    a("v_cndmask_b32 v25, v24, v25, vcc")
    a("v_lshlrev_b32 v25, 1, v25")
    a("s_lshl_b32 s30, s28, 3"); a("s_add_u32 s30, s30, s24")
    a("s_lshr_b32 s31, s30, 7"); a("s_lshl_b32 s31, s31, 4")
    a("s_and_b32 s32, s30, 15"); a("s_add_u32 s31, s31, s32")
    a("s_bfe_u32 s32, s30, 0x30004"); a("s_lshl_b32 s32, s32, 8"); a("s_add_u32 s31, s31, s32")
    a("s_mul_i32 s31, s31, 514")
    for r in range(4):
        for u, base in ((0, 16), (1, 48)):
            a(f"buffer_load_ushort v{base+r}, v25, s[52:55], s31 offen offset:{u*4*514}")
            a(f"buffer_load_ushort v{base+4+r}, v25, s[{SRD_B}:{SRD_B+3}], s31 offen offset:{u*4*514}")
        if r < 3: a(f"s_add_u32 s31, s31, {64*514}")
    a.label(lhi)
    stamp(a, 6)
    gen_f(a, RB)
    a("s_waitcnt lgkmcnt(0)")
    mk_srd(a, SRD_WS, 36, WS_SIZE)
    a("s_cmp_lt_u32 s24, 4"); a(f"s_cbranch_scc1 {lgo}")
    mk_srd(a, SRD_A, 4, 0x200000)
    rows_dma(SRD_A, L_X, 28)
    lwo, lj = a.uid("wo"), a.uid("wj")
    a("s_cmp_ge_u32 s28, 48"); a(f"s_cbranch_scc1 {lwo}")
    mk_srd(a, SRD_A, 40, 512 * 3072)
    a("v_lshrrev_b32 v4, 2, v1")
    a("v_mul_u32_u24 v4, 3072, v4")
    a("v_and_b32 v5, 3, v1")
    a("v_lshl_add_u32 v4, v5, 4, v4")
    a(f"s_mul_i32 s33, s48, {128*3072}")
    a("s_lshl_b32 s31, s28, 6"); a("s_add_u32 s33, s33, s31")
    a("s_lshl_b32 s32, s48, 13")
    for i in range(8):
        a(f"s_add_u32 m0, s32, {L_W + i*1024}")
        a(f"buffer_load_dwordx4 v4, s[{SRD_A}:{SRD_A+3}], s33 offen lds")
        if i < 7: a(f"s_add_u32 s33, s33, {16*3072}")
    a(f"s_branch {lj}")
    a.label(lwo)
    mk_srd(a, SRD_A, 42, 512 * 1024)
    rows_dma(SRD_A, L_W, 38)
    a.label(lj)
    a.label(lgo)
    a("v_mul_u32_u24 v7, 144, v1")
    a("s_lshl_b32 s32, s24, 4")
    a(f"s_add_u32 s32, s32, {L_SCR}")
    a("v_add_u32 v27, s32, v7")
    a("v_lshrrev_b32 v8, 3, v0")
    a("v_and_b32 v9, 7, v0")
    a("v_mul_u32_u24 v10, 144, v8")
    a("v_lshl_add_u32 v10, v9, 4, v10")
    a(f"v_add_u32 v28, {L_SCR}, v10")
    a("s_lshl_b32 s32, s56, 6")
    a("v_add_u32 v8, s32, v8")
    a("v_lshlrev_b32 v24, 13, v8")
    a("v_lshl_or_b32 v24, v9, 4, v24")
    lw0 = a.uid("nw0")
    a("s_cmp_ge_u32 s24, 4"); a(f"s_cbranch_scc1 {lw0}")
    a("s_waitcnt vmcnt(0)")
    for r in range(4): a(f"v_lshl_or_b32 v{16+r}, v{16+4+r}, 16, v{16+r}")
    for r in range(4): a(f"v_lshl_or_b32 v{48+r}, v{48+4+r}, 16, v{48+r}")
    a(f"ds_write_b128 v27, {v(16,4)}")
    a(f"ds_write_b128 v27, {v(48,4)} offset:64")
    a.label(lw0)
    a("s_lshl_b32 s39, s24, 10"); a(f"s_add_u32 s39, s39, {L_SCR}")
    planar_pre(a, 7, 8, 9, 10, 11, 39, 29, 4, L_SUM)
    AD = 60
    a("v_xor_b32 v4, v13, v14")
    a("v_lshlrev_b32 v4, 4, v4")
    a(f"v_lshl_or_b32 v{AD}, v13, 10, v4")
    for b in range(1, 4): a(f"v_xor_b32 v{AD+b}, {b<<6}, v{AD}")
    rd_rows = lambda base: (lambda ks, t, d: a(f"ds_read_b128 {v(d,4)}, v{AD+(ks&3)} offset:{base + t*16384 + (ks>>2)*256}"))
    a("s_lshl_b32 s35, s34, 10"); a("s_lshl_b32 s32, s28, 15"); a("s_add_u32 s35, s35, s32")
    if T0: a(f"s_add_u32 s35, s35, {T0}")
    stamp(a, 2)
    if "nog1" in os.environ.get("KX", ""): a("s_endpgm")
    a("s_waitcnt vmcnt(8) lgkmcnt(0)")
    a("s_barrier")
    a("ds_read_b128 v[28:31], v28")
    a("s_waitcnt lgkmcnt(0)")
    a(f"buffer_store_dwordx4 v[28:31], v24, {W}, s49 offen sc1")
    a("s_barrier")
    stamp(a, 3)
    g16(a, RB, rd_rows(L_X), 1, True, ACC, True, FB, nbuf=7)
    stamp(a, 4)
    a("s_waitcnt vmcnt(1)")
    planar_epi(a, ACC, 7, 8, 9, 10, 11, T, 35, "sc1")
    stamp(a, 5)
    stats_out(a, L_SUM, 29, 28, ST0, T)
    stamp(a, 7)
    if "nog2" in os.environ.get("KX", ""): a("s_endpgm")
    lwo2, lfin = a.uid("wo2"), a.uid("fin")
    a("v_lshrrev_b32 v5, 1, v14"); a("v_lshlrev_b32 v5, 3, v5")
    a("v_and_b32 v4, 1, v14")
    a("s_cmp_ge_u32 s28, 48"); a(f"s_cbranch_scc1 {lwo2}")
    a("v_bfe_u32 v7, v1, 2, 2")
    a("v_lshl_add_u32 v7, v14, 3, v7")
    a("v_lshlrev_b32 v7, 6, v7")
    a("v_and_b32 v8, 3, v1")
    a("v_lshl_or_b32 v7, v8, 3, v7")
    def rd_tr(ks, t, d):
        o = L_W + ks * 2048 + t * 32
        a(f"ds_read_b64_tr_b16 {v(d,2)}, v7 offset:{o}")
        a(f"ds_read_b64_tr_b16 {v(d+2,2)}, v7 offset:{o+256}")
    a("v_lshl_or_b32 v4, v4, 5, v13"); a("v_lshl_or_b32 v11, v4, 4, v5")
    a("s_lshl_b32 s35, s28, 5"); a("s_add_u32 s35, s35, s34"); a("s_lshl_b32 s35, s35, 10")
    a(f"s_add_u32 s35, s35, {WP}")
    g16(a, RB, rd_tr, 2, True, ACC, True, FB, nbuf=7)
    for t in range(2):
        a(f"v_cvt_pk_bf16_f32 v{T+4+2*t}, v{ACC+4*t}, v{ACC+4*t+1}")
        a(f"v_cvt_pk_bf16_f32 v{T+5+2*t}, v{ACC+4*t+2}, v{ACC+4*t+3}")
        a(f"buffer_store_dwordx2 {v(T+4+2*t,2)}, v11, {W}, s35 offen offset:{t*256} nt")
    a(f"s_branch {lfin}")
    a.label(lwo2)
    a("v_lshl_or_b32 v4, v4, 4, v13"); a("v_lshl_or_b32 v11, v4, 4, v5")
    a("s_lshl_b32 s35, s34, 4"); a("s_add_u32 s35, s35, s38"); a("s_lshl_b32 s35, s35, 10")
    a(f"s_add_u32 s35, s35, {WOP}")
    g16(a, RB, rd_rows(L_W), 1, False, ACC, True, FB, nbuf=7)
    for t in range(2):
        a(f"v_cvt_pk_bf16_f32 v{T+4+2*t}, v{ACC+4*t}, v{ACC+4*t+1}")
        a(f"v_cvt_pk_bf16_f32 v{T+5+2*t}, v{ACC+4*t+2}, v{ACC+4*t+3}")
        a(f"buffer_store_dwordx2 {v(T+4+2*t,2)}, v11, {W}, s35 offen offset:{t*512} nt")
    a.label(lfin)
    stamp(a, 8)
    stamp_out(a, 0)
    a("s_endpgm")
    a.label(laux)
    X = os.environ.get("KX", "")
    if "noaux" in X: a("s_endpgm")
    a("s_sub_u32 s2, s2, 256")
    a("s_waitcnt lgkmcnt(0)")
    mk_srd(a, SRD_WS, 36, WS_SIZE)
    mk_srd(a, SRD_O, 42, 512 * 1024)
    a("s_and_b32 s56, s24, 1")
    a("s_and_b32 s30, s2, 7"); a("s_lshl_b32 s30, s30, 1"); a("s_add_u32 s57, s30, s56")
    a("s_lshr_b32 s58, s2, 3")
    a("v_lshrrev_b32 v4, 1, v1"); a("v_lshlrev_b32 v4, 10, v4")
    a("v_and_b32 v5, 1, v1"); a("v_lshl_or_b32 v4, v5, 4, v4")
    a("s_lshl_b32 s32, s57, 15"); a("s_lshl_b32 s33, s58, 5"); a("s_add_u32 s32, s32, s33")
    a("s_lshl_b32 s59, s56, 10"); a(f"s_add_u32 s59, s59, {L_WOF}")
    a("s_mov_b32 m0, s59")
    lq = a.uid("nwd")
    a("s_cmp_ge_u32 s24, 2"); a(f"s_cbranch_scc1 {lq}")
    a(f"buffer_load_dwordx4 v4, s[{SRD_O}:{SRD_O+3}], s32 offen lds")
    a.label(lq)
    a("s_waitcnt vmcnt(0)")
    a("s_barrier")
    lnw = a.uid("nwof")
    a("s_cmp_ge_u32 s24, 2"); a(f"s_cbranch_scc1 {lnw}")
    a("v_lshrrev_b32 v4, 1, v14"); a("v_lshlrev_b32 v4, 4, v4")
    a("v_and_b32 v5, 1, v14"); a("v_lshl_or_b32 v4, v5, 2, v4")
    a("v_bfe_u32 v5, v1, 2, 2"); a("v_add_u32 v4, v4, v5")
    a("v_lshlrev_b32 v4, 5, v4")
    a("v_and_b32 v5, 3, v1"); a("v_lshl_or_b32 v4, v5, 3, v4")
    a("v_add_u32 v4, s59, v4")
    a("s_lshl_b32 s31, s58, 4"); a("s_add_u32 s31, s31, s57"); a("s_lshl_b32 s31, s31, 10")
    a(f"s_add_u32 s31, s31, {WOF}")
    a("ds_read_b64_tr_b16 v[40:41], v4")
    a("ds_read_b64_tr_b16 v[42:43], v4 offset:256")
    a("s_waitcnt lgkmcnt(0)")
    a(f"buffer_store_dwordx4 v[40:43], v6, {W}, s31 offen sc1")
    a.label(lnw)
    lpf = a.uid("npf")
    a("s_cmp_lg_u32 s24, 7"); a(f"s_cbranch_scc1 {lpf}")
    table_srd(a, SRD_O, "ctab", CTAB_SIZE)
    a("v_lshlrev_b32 v4, 5, v1")
    a("s_lshr_b32 s32, s2, 3"); a("s_lshl_b32 s33, s32, 11")
    a(f"buffer_load_dword v48, v4, s[{SRD_O}:{SRD_O+3}], s33 offen")
    a("s_getpc_b64 s[6:7]")
    a.label(name + "_pc2")
    a(f"s_add_u32 s6, s6, mega_kernel-{name}_pc2")
    a("s_addc_u32 s7, s7, 0")
    a("v_lshlrev_b32 v4, 4, v1")
    a("s_lshl_b32 s33, s32, 10")
    a("v_add_u32 v4, s33, v4")
    a("v_min_u32 v4, mega_kernel_end-mega_kernel, v4")
    a("global_load_dword v49, v4, s[6:7]")
    a.label(lpf)
    lnf = a.uid("nf")
    if "nofill" in X: a(f"s_branch {lnf}")
    for i in range(4): a(f"v_mov_b32 v{44+i}, -1")
    a("v_lshlrev_b32 v4, 4, v0")
    a("s_lshl_b32 s32, s2, 13")
    a(f"s_add_u32 s33, s32, {T1}")
    a(f"buffer_store_dwordx4 v[44:47], v4, {W}, s33 offen sc1")
    a(f"s_add_u32 s33, s32, {T2}")
    a(f"buffer_store_dwordx4 v[44:47], v4, {W}, s33 offen sc1")
    a("s_lshl_b32 s33, s2, 7"); a(f"s_add_u32 s33, s33, {ST2}")
    a("s_mov_b64 exec, 0xff")
    a(f"buffer_store_dwordx4 v[44:47], v6, {W}, s33 offen sc1")
    a("s_mov_b64 exec, -1")
    a(f"s_add_u32 s33, s32, {O1}")
    a(f"buffer_store_dwordx4 v[44:47], v4, {W}, s33 offen sc1")
    for i in range(4): a(f"v_mov_b32 v{52+i}, 0")
    a("s_lshl_b32 s33, s2, 10"); a(f"s_add_u32 s33, s33, {FL1}")
    a("v_cmp_gt_u32 vcc, 64, v0")
    a("s_and_saveexec_b64 s[34:35], vcc")
    a(f"buffer_store_dwordx4 v[52:55], v4, {W}, s33 offen sc1")
    a("s_mov_b64 exec, -1")
    a.label(lnf)
    stamp(a, 6)
    if "nowt" in X: a("s_endpgm")
    if DEBUG: a("s_add_u32 s2, s2, 256")
    stamp_out(a, 0)
    a.label(end); a("s_endpgm")
    return kd(name, 128), INIT_LDS
```

```python
from common2 import *
MEGA_LDS = 163840
L_BK, L_BV, L_BQ, L_STG = 0, 32768, 65536, 98304
RG = 16384
L_SC = L_STG + 8192
L_RAW = L_STG + RG + 8192
L_E0 = L_STG + 2 * RG + 8192
L_E1 = L_STG + 3 * RG + 8192
L_SUM = L_STG + 3072
BIG = 2.0 ** 100
SPIN = 0x20000
S_RB, S_G, S_Q = 28, 29, 27
S_TIN, S_TOUT, S_ST, S_KV, S_O, S_L = 50, 51, 52, 53, 54, 55
S_PS, S_CG = 56, 57
S_SPIN = 58
CD, CO = 96, 112
C64, S64, N64, C32, S32, N32, TC, TS, IC, IS, VW = 128, 136, 144, 152, 160, 168, 176, 184, 16, 24, 88
PB = 192
CT = f"s[{SRD_B}:{SRD_B+3}]"
GT_ = f"s[{SRD_A}:{SRD_A+3}]"

def c_consts(a):
    a("s_lshl_b32 s30, s24, 12")
    for i in range(2): a(f"buffer_load_dwordx4 {v(C64+4*i,4)}, v6, {CT}, s30 offen offset:{i*1024}")
    for i in range(2): a(f"buffer_load_dwordx4 {v(S64+4*i,4)}, v6, {CT}, s30 offen offset:{2048+i*1024}")
    a("s_mov_b32 s30, 16384")
    for i in range(2): a(f"buffer_load_dwordx4 {v(C32+4*i,4)}, v6, {CT}, s30 offen offset:{i*1024}")
    for i in range(2): a(f"buffer_load_dwordx4 {v(S32+4*i,4)}, v6, {CT}, s30 offen offset:{2048+i*1024}")
    a("s_lshl_b32 s30, s24, 13"); a("s_add_u32 s30, s30, 20480")
    for i in range(4): a(f"buffer_load_dwordx4 {v(TC+4*i,4)}, v6, {CT}, s30 offen offset:{i*1024}")
    a("s_add_u32 s30, s30, 4096")
    for i in range(4): a(f"buffer_load_dwordx4 {v(IC+4*i,4)}, v6, {CT}, s30 offen offset:{i*1024}")
    a("s_lshl_b32 s30, s2, 13"); a("s_lshl_b32 s31, s24, 11"); a("s_add_u32 s30, s30, s31")
    a(f"s_add_u32 s30, s30, {WT}")
    a(f"buffer_load_dwordx4 {v(VW,4)}, v6, {W}, s30 offen")
    a(f"buffer_load_dwordx4 {v(VW+4,4)}, v6, {W}, s30 offen offset:1024")

def spin_check(a, lretry):
    lx = a.uid("px")
    a(f"s_cbranch_vccz {lx}")
    a(f"s_sub_u32 s{S_SPIN}, s{S_SPIN}, 1")
    a(f"s_cbranch_scc0 {lretry}")
    a(f"s_mov_b32 s{S_SPIN}, 0")
    a.label(lx)

def phase_c(a, first_hook=None, lskip=None):
    DF, AC, PK, T = 32, 64, 80, 192
    lp = a.uid("cpoll")
    a("v_lshrrev_b32 v4, 3, v0")
    a("v_and_b32 v7, 7, v0")
    a("v_lshlrev_b32 v7, 3, v7")
    a("v_lshl_or_b32 v7, v4, 15, v7")
    a("v_lshlrev_b32 v12, 4, v0")
    a("s_lshl_b32 s33, s2, 7")
    a(f"s_add_u32 s31, s33, s{S_TIN}")
    a(f"v_mov_b32 v15, {f32hex(1/512)}")
    a(f"v_mov_b32 v5, {f32hex(1e-5)}")
    a.label(lp)
    a(f"buffer_load_dwordx2 v[8:9], v7, {W}, s31 offen sc1")
    a(f"buffer_load_dwordx2 v[10:11], v7, {W}, s31 offen offset:64 sc1")
    for p in range(4):
        a(f"s_add_u32 s34, s{S_ST}, {p*8192}")
        a(f"buffer_load_dwordx4 {v(DF+4*p,4)}, v12, {W}, s34 offen sc1")
    if first_hook: first_hook()
    a("s_waitcnt vmcnt(0)")
    if lskip: a.label(lskip)
    for i in range(4):
        a(f"v_add_f32 v{DF+i}, v{DF+i}, v{DF+4+i}")
        a(f"v_add_f32 v{DF+8+i}, v{DF+8+i}, v{DF+12+i}")
    a("v_max3_u32 v4, v8, v9, v10")
    for i in range(4): a(f"v_add_f32 v{DF+i}, v{DF+i}, v{DF+8+i}")
    a("v_max_u32 v4, v4, v11")
    a(f"v_add_f32 v{DF+4}, v{DF}, v{DF+1}")
    a(f"v_add_f32 v{DF+5}, v{DF+2}, v{DF+3}")
    a("v_cmp_eq_u32 s[34:35], -1, v4")
    a(f"v_cmp_u_f32 vcc, v{DF+4}, v{DF+5}")
    for i in range(4): a(f"v_fma_f32 v{DF+i}, v{DF+i}, v15, v5")
    a("s_or_b64 vcc, vcc, s[34:35]")
    spin_check(a, lp)
    stamp(a, 2)
    for i in range(4): a(f"v_rsq_f32 v{DF+i}, v{DF+i}")
    a("v_lshlrev_b32 v7, 3, v0")
    a(f"v_add_u32 v7, {L_SC}, v7")
    a(f"ds_write_b64 v7, v[8:9] offset:{RG}")
    a(f"ds_write_b64 v7, v[10:11] offset:{RG+4096}")
    lj = a.uid("jnz")
    a("s_cmp_lg_u32 s2, 0"); a(f"s_cbranch_scc1 {lj}")
    a("v_mov_b32 v8, v10"); a("v_mov_b32 v9, v11"); a("v_mov_b32 v10, 0"); a("v_mov_b32 v11, 0")
    a.label(lj)
    for p in range(2):
        for i in range(2):
            src = 8 + 2 * p + i
            t = DF + 4 + 2 * i
            a(f"v_lshlrev_b32 v{t}, 16, v{src}")
            a(f"v_and_b32 v{t+1}, 0xffff0000, v{src}")
            a(f"v_pk_mul_f32 {v(t,2)}, {v(t,2)}, {v(DF+2*i,2)}")
            a(f"v_cvt_pk_bf16_f32 v{DF+8+2*p+i}, v{t}, v{t+1}")
        a(f"ds_write_b64 v7, {v(DF+8+2*p,2)} offset:{4096*p}")
    a("s_waitcnt lgkmcnt(0)")
    a("s_barrier")

def phase_c_compute(a):
    DF, AC, PK, T = 32, 64, 80, 192
    a("v_bfe_u32 v4, v1, 2, 2")
    a("v_lshl_add_u32 v4, v14, 3, v4")
    a("v_lshlrev_b32 v4, 6, v4")
    a("v_and_b32 v5, 3, v1")
    a("v_lshl_or_b32 v4, v5, 3, v4")
    a(f"v_add_u32 v4, {L_SC}, v4")
    fr = lambda part, mt, ks: DF + 4 * (part * 4 + mt * 2 + ks)
    for mt in range(2):
        for ks in range(2):
            for part in range(2):
                o = part * 4096 + ks * 2048 + mt * 32
                a(f"ds_read_b64_tr_b16 {v(fr(part,mt,ks),2)}, v4 offset:{o}")
                a(f"ds_read_b64_tr_b16 {v(fr(part,mt,ks)+2,2)}, v4 offset:{o+256}")
    for i in range(8):
        a(f"v_xor_b32 v{N64+i}, 0x80008000, v{S64+i}")
    acc = lambda part, mt: AC + 4 * (part * 2 + mt)
    def big(Cc, Sre, Sim, per, fill=()):
        n = 0; fill = list(fill)
        for mt in range(2):
            for ks in range(2):
                n += 1
                a(f"s_waitcnt lgkmcnt({(4-n)*2*per})")
                c0 = lambda p: "0" if ks == 0 else v(acc(p, mt), 4)
                seq = [f"{M16} {v(acc(0,mt),4)}, {v(fr(0,mt,ks),4)}, {v(Cc+4*ks,4)}, {c0(0)}",
                       f"{M16} {v(acc(1,mt),4)}, {v(fr(1,mt,ks),4)}, {v(Cc+4*ks,4)}, {c0(1)}",
                       f"{M16} {v(acc(0,mt),4)}, {v(fr(1,mt,ks),4)}, {v(Sre+4*ks,4)}, {v(acc(0,mt),4)}",
                       f"{M16} {v(acc(1,mt),4)}, {v(fr(0,mt,ks),4)}, {v(Sim+4*ks,4)}, {v(acc(1,mt),4)}"]
                for m in seq:
                    a(m)
                    for _ in range(2):
                        if fill: a(fill.pop(0))
        for f in fill: a(f)
    fill = [f"v_xor_b32 v{N32+i}, 0x80008000, v{S32+i}" for i in range(8)]
    fill += ["v_mul_u32_u24 v4, 144, v13", "v_lshl_add_u32 v4, v14, 3, v4", "s_lshl_b32 s31, s24, 5",
             f"s_add_u32 s31, s31, {L_E0}", "v_add_u32 v4, s31, v4",
             "v_lshrrev_b32 v5, 2, v13", "v_lshlrev_b32 v5, 3, v5", "v_and_or_b32 v5, v13, 3, v5",
             "v_mul_u32_u24 v5, 144, v5", "v_lshl_add_u32 v5, v14, 4, v5", f"v_add_u32 v5, {L_E0}, v5",
             "v_lshlrev_b32 v7, 6, v13", "v_lshl_or_b32 v7, v14, 4, v7", "s_lshl_b32 s31, s24, 10",
             "v_add_u32 v7, s31, v7", f"v_add_u32 v12, {L_RAW}, v7",
             "v_lshlrev_b32 v7, 15, v13", "v_lshl_or_b32 v7, v14, 4, v7"]
    big(C64, S64, N64, 2, fill)
    stamp(a, 3)
    def cmul(cr, ci, sign):
        order = [(0, 0), (0, 2), (1, 0), (1, 2)]
        for mt, r in order:
            i = 4 * mt + r
            ar, ai = v(acc(0, mt) + r, 2), v(acc(1, mt) + r, 2)
            a(f"v_pk_mul_f32 {v(T+i,2)}, {ar}, {v(cr+i,2)}")
            a(f"v_pk_mul_f32 {v(T+8+i,2)}, {ai}, {v(cr+i,2)}")
            n1 = " neg_lo:[1,0,0] neg_hi:[1,0,0]"
            a(f"v_pk_fma_f32 {v(T+i,2)}, {ai}, {v(ci+i,2)}, {v(T+i,2)}{n1 if sign>0 else ''}")
            a(f"v_pk_fma_f32 {v(T+8+i,2)}, {ar}, {v(ci+i,2)}, {v(T+8+i,2)}{'' if sign>0 else n1}")
        for i in range(8): a(f"v_cvt_pk_bf16_f32 v{PK+i}, v{T+2*i}, v{T+2*i+1}")
    cmul(TC, TS, -1)
    Br, Bi = v(PK, 4), v(PK + 4, 4)
    WR, WI = DF, DF + 8
    unp = []
    for i in range(8):
        unp.append(f"v_lshlrev_b32 v{WR+i}, 16, v{VW+i}")
        unp.append(f"v_and_b32 v{WI+i}, 0xffff0000, v{VW+i}")
    seq = []
    for mt in range(2):
        seq.append(f"{M16} {v(acc(0,mt),4)}, {v(C32+4*mt,4)}, {Br}, 0")
        seq.append(f"{M16} {v(acc(1,mt),4)}, {v(C32+4*mt,4)}, {Bi}, 0")
    for mt in range(2):
        seq.append(f"{M16} {v(acc(0,mt),4)}, {v(S32+4*mt,4)}, {Bi}, {v(acc(0,mt),4)}")
        seq.append(f"{M16} {v(acc(1,mt),4)}, {v(N32+4*mt,4)}, {Br}, {v(acc(1,mt),4)}")
    for m in seq:
        a(m); a(unp.pop(0)); a(unp.pop(0))
    cmul(WR, WI, +1)
    for nt in range(2):
        a(f"{M16} {v(acc(0,nt),4)}, {Br}, {v(C32+4*nt,4)}, 0")
        a(f"{M16} {v(acc(1,nt),4)}, {Bi}, {v(C32+4*nt,4)}, 0")
    a(f"ds_read_b128 v[8:11], v12")
    a(f"ds_read_b128 {v(VW,4)}, v12 offset:4096")
    for nt in range(2):
        a(f"{M16} {v(acc(0,nt),4)}, {Bi}, {v(N32+4*nt,4)}, {v(acc(0,nt),4)}")
        a(f"{M16} {v(acc(1,nt),4)}, {Br}, {v(S32+4*nt,4)}, {v(acc(1,nt),4)}")
    cmul(IC, IS, +1)
    for part in range(2):
        for nt in range(2):
            a(f"ds_write_b64 v4, {v(PK+4*part+2*nt,2)} offset:{part*RG + nt*16*144}")
    a("s_waitcnt lgkmcnt(0)")
    stamp(a, 4)
    a("s_barrier")
    for mt in range(2):
        for ks in range(2):
            for part in range(2):
                a(f"ds_read_b128 {v(fr(part,mt,ks),4)}, v5 offset:{part*RG + mt*4*144 + ks*64}")
    fill = []
    for part in range(2):
        raw = 8 if part == 0 else VW
        for i in range(4):
            fill.append(f"v_lshlrev_b32 v{T+8*part+2*i}, 16, v{raw+i}")
            fill.append(f"v_and_b32 v{T+8*part+2*i+1}, 0xffff0000, v{raw+i}")
    big(C64, N64, S64, 1, fill)
    a("s_barrier")
    lj = a.uid("jnz")
    a("s_cmp_lg_u32 s2, 0"); a(f"s_cbranch_scc1 {lj}")
    for i in range(8): a(f"v_mov_b32 v{AC+8+i}, v{AC+i}")
    for i in range(8): a(f"v_mov_b32 v{AC+i}, 0")
    a.label(lj)
    a("s_lshl_b32 s31, s2, 7")
    a("s_lshl_b32 s32, s24, 19")
    a("s_add_u32 s31, s31, s32")
    a(f"s_add_u32 s31, s31, s{S_TOUT}")
    for part in range(2):
        for i in range(4):
            a(f"v_pk_add_f32 {v(T+8*part+2*i,2)}, {v(T+8*part+2*i,2)}, {v(AC+8*part+2*i,2)}")
            a(f"v_cvt_pk_bf16_f32 v{PK+4*part+i}, v{T+8*part+2*i}, v{T+8*part+2*i+1}")
        a(f"buffer_store_dwordx4 {v(PK+4*part,4)}, v7, {W}, s31 offen offset:{64*part} sc1")

def masks_(a):
    a("v_lshlrev_b32 v4, 2, v3")
    a("v_sub_u32 v4, v2, v4")
    a("v_cvt_f32_i32 v4, v4")
    a(f"v_mul_f32 v4, {f32hex(BIG)}, v4")
    for q in range(4):
        for r in range(4):
            c = 8 * q + r; i = 4 * q + r
            a(f"v_subrev_f32 v{CD+i}, {f32hex(c*BIG)}, v4")
            a(f"v_sub_f32 v{CO+i}, {f32hex((c-1)*BIG)}, v4")
            a(f"v_min_f32 v{CD+i}, 0, v{CD+i}")
            a(f"v_min_f32 v{CO+i}, 0, v{CO+i}")

def tr_addr_q(a):
    a("v_bfe_u32 v8, v1, 2, 2")
    a("v_lshl_add_u32 v8, v3, 2, v8")
    a("v_lshlrev_b32 v8, 6, v8")
    a("v_bfe_u32 v4, v1, 4, 1")
    a("v_lshl_or_b32 v8, v4, 5, v8")
    a("v_and_b32 v4, 3, v1")
    a("v_lshl_or_b32 v8, v4, 3, v8")
    a("v_add_u32 v8, s31, v8")
    a("v_lshlrev_b32 v9, 16, v3")
    a("v_sub_u32 v9, v9, v3")
    a("v_or_b32 v9, 0xffff0000, v9")

L_RS = L_STG - 0
def phase_q_m(a, cold):
    VA, AK, AV, AQ, BF = 128, 32, 48, 16, 64
    a("s_lshl_b32 s31, s24, 14")
    a(f"s_add_u32 s31, s31, {L_STG}")
    tr_addr_q(a)
    def rdA(ks):
        a(f"ds_read_b64_tr_b16 {v(VA+4*ks,2)}, v8 offset:{(ks&15)*1024}")
        a(f"ds_read_b64_tr_b16 {v(VA+4*ks+2,2)}, v8 offset:{(ks&15)*1024+512}")
    def rdB(ks):
        b = BF + 8 * (ks % 3)
        a(f"ds_read_b128 {v(b,4)}, v6 offset:{L_BK+ks*1024}")
        a(f"ds_read_b128 {v(b+4,4)}, v6 offset:{L_BV+ks*1024}")
    a("s_waitcnt vmcnt(0)")
    stamp(a, 5)
    a("s_barrier")
    a("s_barrier")
    stamp(a, 6); stamp(a, 6, "clk"); cstamp(a, 8)
    q = []
    for ks in range(4): rdA(ks); q += [("A", ks)] * 2
    rdB(0); rdB(1); q += [("B", 0)] * 2 + [("B", 1)] * 2
    for k in range(32):
        g, j = k >> 2, k & 3
        if j == 1 and g + 1 < 8:
            idx = [i for i, x in enumerate(q) if x[0] == "A"]
            if idx:
                q = q[idx[-1] + 1:]
                a(f"s_waitcnt lgkmcnt({len(q)})")
            if g < 4: stamp(a, 6 + 2 * g, "st") if g < 3 else None
            a("s_barrier")
            if g < 3: stamp(a, 7 + 2 * g, "st")
        if g + 1 < 8:
            for kk in {1: [0], 2: [1, 2], 3: [3]}.get(j, []):
                rdA(4 * g + 4 + kk); q += [("A", 4 * g + 4 + kk)] * 2
        if k + 2 < 32: rdB(k + 2); q += [("B", k + 2)] * 2
        need = [i for i, x in enumerate(q) if x == ("B", k) or x == ("A", k)]
        if need:
            q = q[need[-1] + 1:]
            a(f"s_waitcnt lgkmcnt({len(q)})")
        if k == 0:
            a(f"v_mov_b32 v12, v{VA}")
            a(f"v_and_b32 v{VA}, v9, v{VA}")
        b = BF + 8 * (k % 3)
        A = v(VA + 4 * k, 4)
        a(f"{MF} {v(AK,16)}, {v(b,4)}, {A}, {'0' if k==0 else v(AK,16)}")
        a(f"{MF} {v(AV,16)}, {A}, {v(b+4,4)}, {'0' if k==0 else v(AV,16)}")
    stamp(a, 7); stamp(a, 7, "clk"); cstamp(a, 9)
    a("s_barrier")
    a(f"v_add_u32 v5, {L_BQ}, v6")
    NB = 4
    rdq = lambda ks: a(f"ds_read_b128 {v(BF+4*(ks%NB),4)}, v5 offset:{ks*1024}")
    RS = 80
    a("v_lshl_add_u32 v4, v2, 2, s31")
    a("v_lshl_add_u32 v9, v3, 4, s31")
    a("ds_read_b32 v10, v4 offset:5120")
    for q_ in range(4): a(f"ds_read_b128 {v(RS+4*q_,4)}, v9 offset:{5120+32*q_}")
    E = []
    E += [f"s_lshl_b32 s32, s{S_G}, 6", f"s_add_u32 s32, s32, s{S_Q}", "s_lshl_b32 s32, s32, 12", f"s_add_u32 s32, s32, s{S_KV}",
          "v_add_u32 v7, s31, v6"]
    for hh in range(2):
        for i in range(8): E.append(f"v_mul_f32 v{AK+8*hh+i}, v{AK+8*hh+i}, v10")
        for i in range(4): E.append(f"v_cvt_pk_bf16_f32 v{AK+4*hh+i}, v{AK+8*hh+2*i}, v{AK+8*hh+2*i+1}")
        E.append(f"buffer_store_dwordx4 {v(AK+4*hh,4)}, v6, {W}, s32 offen offset:{hh*1024} sc1")
    for hh in range(2):
        for i in range(8): E.append(f"v_mul_f32 v{AV+8*hh+i}, v{AV+8*hh+i}, v{RS+8*hh+i}")
        for i in range(4): E.append(f"v_cvt_pk_bf16_f32 v{AV+4*hh+i}, v{AV+8*hh+2*i}, v{AV+8*hh+2*i+1}")
        E.append(f"buffer_store_dwordx4 {v(AV+4*hh,4)}, v6, {W}, s32 offen offset:{2048+hh*1024} sc1")
    for x in (f"DS ds_write_b128 v7, {v(AK,4)}", f"DS ds_write_b128 v7, {v(AK+4,4)} offset:1024",
              f"DS ds_write_b128 v7, {v(AV,4)} offset:2048", f"DS ds_write_b128 v7, {v(AV+4,4)} offset:3072"):
        E += [x, "SKIP", "SKIP", "SKIP"]
    E += [f"v_mul_f32 v10, {f32hex(0.25*math.log2(math.e))}, v10", "v_mov_b32 v11, v10"]
    E += [f"s_lshl_b32 s33, s{S_RB}, 4", f"s_add_u32 s33, s33, s{S_G}", "s_lshl_b32 s33, s33, 9", "s_lshl_b32 s34, s24, 6",
          "s_add_u32 s33, s33, s34", f"s_lshl_b32 s34, s{S_L}, 17", "s_add_u32 s33, s33, s34",
          f"s_add_u32 s33, s33, {FL1 + 16*512 + 256}", f"v_mul_u32_u24 v4, {16*512-256}, v1",
          f"v_add_u32 v9, s{S_RB}, v1", "v_cmp_gt_u32 vcc, 15, v9", "v_mov_b32 v9, 1", "s_and_b64 s[34:35], vcc, 3"]
    def tile(acc, extra):
        q = []
        def rd(ks): rdq(ks); q.append(("B", ks))
        for ks in range(NB - 1): rd(ks)
        extra = list(extra)
        for ks in range(32):
            idx = q.index(("B", ks))
            a(f"s_waitcnt lgkmcnt({min(len(q)-1-idx,15)})")
            del q[:idx + 1]
            a(f"{MF} {v(acc,16)}, {v(BF+4*(ks%NB),4)}, {v(VA+4*ks,4)}, {'0' if ks==0 else v(acc,16)}")
            if ks + NB - 1 < 32: rd(ks + NB - 1)
            for _ in range(4):
                if not extra: break
                e = extra.pop(0)
                if e == "SKIP": pass
                elif e.startswith("DS "):
                    a(e[3:]); q.append(("X", 0))
                else: a(e)
        assert not extra
    while len(E) < 4 * 26: E.append("SKIP")
    E += ["s_waitcnt vmcnt(0)", "s_mov_b64 exec, s[34:35]",
          f"buffer_store_dword v9, v4, {W}, s33 offen sc1", "s_mov_b64 exec, -1", "s_barrier"]
    tile(AQ, E)
    for i in range(8): a(f"v_pk_mul_f32 {v(AQ+2*i,2)}, {v(AQ+2*i,2)}, v[10:11]")
    for i in range(8): a(f"v_cvt_pk_bf16_f32 v{AQ+i}, v{AQ+2*i}, v{AQ+2*i+1}")
    a(f"ds_write_b128 v7, {v(AQ+4,4)} offset:4096")
    stamp(a, 8)
    lx = a.uid("nox3")
    a(f"s_cmp_eq_u32 s{S_L}, 0"); a(f"s_cbranch_scc1 {lx}")
    a(f"v_mov_b32 v{VA}, v12")
    a(f"v_mov_b32 v5, v6")
    a("s_barrier")
    tile(AK, [])
    a(f"s_lshl_b32 s32, s{S_Q}, 15"); a(f"s_lshl_b32 s33, s{S_G}, 11"); a("s_add_u32 s32, s32, s33")
    a(f"s_add_u32 s32, s32, {X3B}")
    a("v_lshlrev_b32 v4, 5, v1")
    for i in range(8): a(f"v_cvt_pk_bf16_f32 v{AK+i}, v{AK+2*i}, v{AK+2*i+1}")
    a(f"buffer_store_dwordx4 {v(AK,4)}, v4, {W}, s32 offen sc1")
    a(f"buffer_store_dwordx4 {v(AK+4,4)}, v4, {W}, s32 offen offset:16 sc1")
    a.label(lx)
    attn_pre(a)
    a("s_waitcnt lgkmcnt(0)")
    a("s_barrier")

def stream_loader(a, cold):
    CK = 32
    a("s_lshl_b32 s31, s25, 14")
    a(f"s_add_u32 s31, s31, {L_STG}")
    a(f"s_lshl_b32 s59, s{S_Q}, 15")
    a(f"s_add_u32 s59, s59, s{S_TOUT}")
    tr_addr_q(a)
    a("s_mov_b32 s38, 0xaaaaaaaa"); a("s_mov_b32 s39, 0xaaaaaaaa")
    a("s_mov_b32 s4, 0xcccccccc"); a("s_mov_b32 s5, 0xcccccccc")
    def dmag(g):
        a(f"s_add_u32 s30, s59, {g*4096}")
        a(f"s_add_u32 m0, s31, {(g&3)*4096}")
        for i in range(4): a(f"buffer_load_dwordx4 v6, {W}, s30 offen offset:{i*1024} sc1 lds")
    a("v_lshlrev_b32 v5, 5, v1")
    a(f"s_and_b32 s33, s{S_G}, 7"); a("s_lshl_b32 s33, s33, 11"); a("s_add_u32 s33, s33, s59"); a("s_add_u32 s33, s33, 16384")
    a("s_waitcnt vmcnt(0)")
    a("s_setprio 2")
    a("s_barrier")
    stamp(a, 3)
    dmag(0)
    a(f"buffer_load_dword v60, v5, {W}, s33 offen sc1")
    for g in range(1, 4): dmag(g)
    for g in range(8):
        lr, lb = a.uid(f"rty{g}"), a.uid(f"bk{g}")
        issued = min(g + 2, 7) if g >= 2 else 3
        pre = min(g + 1, 7) if g >= 3 else 3
        a(f"s_waitcnt vmcnt({(pre-g)*4 + (1 if g == 0 else 0)})")
        if g in (4, 5): stamp(a, 6 + 3 * (g - 4), "st")
        for i in range(4):
            a(f"ds_read_b64_tr_b16 {v(CK+4*i,2)}, v8 offset:{(g&3)*4096+i*1024}")
            a(f"ds_read_b64_tr_b16 {v(CK+4*i+2,2)}, v8 offset:{(g&3)*4096+i*1024+512}")
        if g >= 2 and g + 2 < 8: dmag(g + 2)
        if g in (4, 5): stamp(a, 7 + 3 * (g - 4), "st")
        a.label(lb)
        for i in range(4):
            a(f"s_waitcnt lgkmcnt({6-2*i})")
            if g == 0 and i == 0:
                a(f"v_or_b32 v4, 0xffff0000, v{CK}")
                a(f"v_and_b32 v{CK}, v9, v{CK}")
                a("v_cmp_eq_u32 s[34:35], -1, v4")
            for e in range(2):
                c = "0" if i == 0 else v(48+4*e, 4)
                a(f"v_mfma_f32_4x4x4_16b_bf16 {v(48+4*e,4)}, {v(CK+4*i+2*e,2)}, {v(CK+4*i+2*e,2)}, {c}")
        a("v_cmp_u_f32 vcc, v48, v52")
        if g == 0: a("s_or_b64 vcc, vcc, s[34:35]")
        a(f"s_cbranch_vccnz {lr}")
        a.label(lb + "_ok")
        if g in (4, 5): stamp(a, 8 + 3 * (g - 4), "st")
        a("s_barrier")
        if g == 0: stamp(a, 4)
        if g == 5: stamp(a, 12, "st")
        for e in range(4):
            if g == 0: a(f"v_add_f32 v{56+e}, v{48+e}, v{52+e}")
            else:
                a(f"v_add_f32 v{48+e}, v{48+e}, v{52+e}")
                a(f"v_add_f32 v{56+e}, v{56+e}, v{48+e}")
        def cold_code(g=g, lr=lr, lb=lb, issued=issued):
            a.label(lr)
            a(f"s_sub_u32 s{S_SPIN}, s{S_SPIN}, 1")
            lgo = a.uid("go")
            a(f"s_cbranch_scc0 {lgo}")
            a(f"s_mov_b32 s{S_SPIN}, 0")
            a(f"s_branch {lb}_ok")
            a.label(lgo)
            if DEBUG: a("s_add_u32 s96, s96, 1")
            a("s_waitcnt vmcnt(0)")
            for gg in range(g, issued + 1): dmag(gg)
            a(f"s_waitcnt vmcnt({(issued-g)*4})")
            for i in range(4):
                a(f"ds_read_b64_tr_b16 {v(CK+4*i,2)}, v8 offset:{(g&3)*4096+i*1024}")
                a(f"ds_read_b64_tr_b16 {v(CK+4*i+2,2)}, v8 offset:{(g&3)*4096+i*1024+512}")
            a(f"s_branch {lb}")
        cold.append(cold_code)
    a("v_cndmask_b32 v56, v56, v57, s[38:39]")
    a("v_cndmask_b32 v58, v58, v59, s[38:39]")
    a("v_cndmask_b32 v15, v56, v58, s[4:5]")
    a("v_mov_b32 v11, v15")
    a("v_permlane32_swap_b32 v15, v11")
    a("v_add_f32 v15, v15, v11")
    a(f"v_mov_b32 v11, {f32hex(1e-5)}")
    a(f"v_fmac_f32 v11, {f32hex(1/512)}, v15")
    a("v_rsq_f32 v10, v11")
    a("v_lshl_add_u32 v4, v2, 2, s31")
    a("ds_write_b32 v4, v10 offset:5120")
    a("s_setprio 0")
    a("s_waitcnt lgkmcnt(0)")
    stamp(a, 5)

def btile_dma(a, srd, gbase_sgpr, gofs, lbase):
    for b in range(2):
        a(f"s_add_u32 s32, s{gbase_sgpr}, {gofs + b*4096}")
        a(f"s_add_u32 m0, s33, {lbase + b*4096}")
        for i in range(4): a(f"buffer_load_dwordx4 v6, {srd}, s32 offen offset:{i*1024} lds")

def touch(a, srd, base, n, vd):
    a("v_and_b32 v4, 255, v0"); a("v_lshlrev_b32 v4, 6, v4")
    a("s_lshr_b32 s34, s2, 3"); a(f"s_mul_i32 s34, s34, {n*16384}")
    for i in range(n):
        a(f"s_add_u32 s33, s34, {base + i*16384}")
        a(f"buffer_load_dword v{vd+i}, v4, {srd}, s33 offen")

def fill(a, vaddr, sbase, regions, nst, vd=8):
    for reg in regions:
        for i in range(nst):
            a(f"s_add_u32 s32, s{sbase}, {reg + i*4096}")
            a(f"buffer_store_dwordx4 {v(vd,4)}, v{vaddr}, {W}, s32 offen sc1")

def phase_q_h(a, cold):
    stream_loader(a, cold)
    a("s_barrier")
    l1, l2 = a.uid("hl1"), a.uid("hl2")
    a(f"s_cmp_eq_u32 s{S_L}, 0"); a(f"s_cbranch_scc1 {l1}")
    a("s_lshl_b32 s33, s25, 13")
    a(f"s_lshl_b32 s34, s{S_G}, 15"); a("s_add_u32 s34, s34, s33")
    btile_dma(a, GT_, 34, 0, L_BK)
    a("s_barrier")
    a("s_waitcnt vmcnt(0)")
    a("s_barrier")
    a(f"s_branch {l2}")
    a.label(l1)
    touch(a, W, WOP, 1, 64)
    a("s_barrier")
    a.label(l2)
    lnh, lp = a.uid("nohalo"), a.uid("hpoll")
    a(f"s_lshl_b32 s32, s{S_RB}, 1"); a("s_add_u32 s32, s32, s25")
    a("s_cmp_lt_u32 s32, 4"); a(f"s_cbranch_scc1 {lnh}")
    a("s_lshl_b32 s32, s32, 1"); a("s_sub_u32 s32, s32, 8")
    a(f"s_lshl_b32 s33, s{S_G}, 6"); a("s_add_u32 s32, s32, s33"); a("s_lshl_b32 s32, s32, 12")
    a(f"s_add_u32 s32, s32, s{S_KV}")
    a("s_add_u32 s33, s32, 4096")
    a("s_lshl_b32 s34, s25, 14"); a(f"s_add_u32 s34, s34, {L_STG+8192}")
    a("v_add_u32 v4, s34, v6")
    a(f"s_lshl_b32 s35, s{S_RB}, 4"); a(f"s_add_u32 s35, s35, s{S_G}"); a("s_lshl_b32 s35, s35, 9")
    a("s_lshl_b32 s34, s25, 7"); a("s_add_u32 s35, s35, s34")
    a(f"s_lshl_b32 s34, s{S_L}, 17"); a("s_add_u32 s35, s35, s34"); a(f"s_add_u32 s35, s35, {FL1}")
    a("v_and_b32 v7, 1, v1"); a("v_lshlrev_b32 v7, 6, v7")
    stamp(a, 6)
    a.label(lp)
    if DEBUG: a("s_add_u32 s96, s96, 1")
    a(f"buffer_load_dword v5, v7, {W}, s35 offen sc1")
    a("s_waitcnt vmcnt(0)")
    a("v_cmp_eq_u32 vcc, 0, v5")
    spin_check(a, lp)
    stamp(a, 7)
    for i in range(8):
        a(f"buffer_load_dwordx4 {v(32+4*i,4)}, v6, {W}, s{32+(i>>2)} offen offset:{(i&3)*1024} sc1")
    for i in range(8):
        a(f"s_waitcnt vmcnt({7-i})")
        a(f"ds_write_b128 v4, {v(32+4*i,4)} offset:{i*1024}")
    a.label(lnh)
    attn_pre(a)
    a("s_waitcnt lgkmcnt(0)")
    stamp(a, 8)
    a("s_barrier")
    a("s_lshl_b32 s31, s25, 14"); a(f"s_add_u32 s31, s31, {L_STG}")
    a("v_add_u32 v7, s31, v6")
    a("ds_read_b128 v[16:19], v7 offset:4096")

def attn_bases(a):
    for b in range(9):
        a(f"s_add_u32 s32, s25, {8-b}")
        a("s_lshl_b32 s34, s32, 14"); a(f"s_add_u32 s34, s34, {L_STG-8*RG}")
        a("s_lshr_b32 s33, s32, 1"); a("s_lshl_b32 s33, s33, 14")
        a("s_and_b32 s35, s32, 1"); a("s_lshl_b32 s35, s35, 12"); a("s_add_u32 s33, s33, s35")
        a(f"s_add_u32 s33, s33, {L_STG+8192}")
        a("s_cmp_ge_u32 s32, 8")
        a(f"s_cselect_b32 s{40+b}, s34, s33")
    a("s_lshr_b32 s33, s24, 1"); a("s_lshl_b32 s33, s33, 14"); a("s_and_b32 s34, s24, 1"); a("s_lshl_b32 s34, s34, 10")
    a("s_add_u32 s61, s33, s34"); a(f"s_add_u32 s61, s61, {L_STG+6144}")
    a("s_movk_i32 s49, 0x207")

def attn_pre(a):
    VB = 72
    a("s_lshl_b32 s32, s26, 10")
    a("v_add_u32 v8, s32, v6")
    a("v_and_b32 v9, 47, v1")
    a("v_lshlrev_b32 v9, 4, v9")
    a("s_lshl_b32 s32, s26, 8"); a("s_add_u32 s32, s32, 2048")
    a("v_add_u32 v9, s32, v9")
    for i in range(16): a(f"v_mov_b32 v{VB+i}, 0x3f803f80")
    a("s_mov_b32 s38, 0xffff"); a("s_mov_b32 s39, 0xffff")
    a(f"s_add_u32 s30, s{S_Q}, 1"); a("s_min_u32 s30, s30, 9")
    a(f"s_lshl_b32 s60, s{S_CG}, 3"); a("s_add_u32 s60, s60, s24")
    a("s_lshl_b32 s32, s60, 10")
    a("s_lshl_b32 s60, s60, 14")
    a(f"s_lshl_b32 s33, s{S_L}, 19"); a("s_add_u32 s60, s60, s33")
    a(f"s_add_u32 s60, s60, {WOP}")
    a(f"s_lshl_b32 s33, s{S_PS}, 15"); a("s_add_u32 s32, s32, s33"); a(f"s_add_u32 s32, s32, s{S_TOUT}")
    a("s_mov_b32 m0, s61")
    a(f"buffer_load_dwordx4 v6, {W}, s32 offen sc1 lds")
    for i in range(4): a(f"v_mov_b32 v{88+i}, -1")
    a("v_lshlrev_b32 v15, 4, v0")
    a("s_lshl_b32 s59, s2, 13")
    a("v_add_u32 v12, 4096, v6")

def phase_attn(a, cold):
    QF = v(16, 4)
    S0, S1, PP, VB, OA, KF = 32, 48, 64, 72, 128, 144
    for b in range(9):
        a(f"v_add_u32 v{20+b}, s{40+b}, v8")
        a(f"ds_read_b128 {v(KF+4*b,4)}, v{20+b}")
    def rdV(b):
        a(f"v_add_u32 v4, s{40+b}, v9")
        a("s_mov_b64 exec, s[38:39]")
        a(f"ds_read_b128 {v(VB+8*(b&1),4)}, v4")
        a(f"ds_read_b128 {v(VB+8*(b&1)+4,4)}, v4 offset:1024")
        a("s_mov_b64 exec, -1")
    rdV(0)
    FR = [T3, O2]
    def pload(i):
        if i % 2 == 0 and 2 <= i // 2 < 4:
            lq = a.uid("nf")
            a(f"s_cmp_lg_u32 s{S_L}, 0"); a(f"s_cbranch_scc1 {lq}")
            a(f"s_add_u32 s33, s59, {FR[i//2-2]}")
            a(f"buffer_store_dwordx4 v[88:91], v15, {W}, s33 offen sc1")
            a.label(lq)
        if i == 8: a("s_add_u32 s60, s60, 8192")
        o = (i & 7) * 1024
        if o >= 4096:
            a(f"buffer_load_dwordx4 {v(PB+4*i,4)}, v12, {W}, s60 offen offset:{o-4096}")
        else:
            a(f"buffer_load_dwordx4 {v(PB+4*i,4)}, v6, {W}, s60 offen offset:{o}")
    a("s_waitcnt lgkmcnt(9)")
    stamp(a, 9); cstamp(a, 10)
    S = lambda b: S0 if b % 2 == 0 else S1
    ldone = a.uid("adone")
    exits = []
    a(f"{MF} {v(S0,16)}, {v(KF,4)}, {QF}, {v(CD,16)}")
    for b in range(9):
        s_ = S(b); vb = VB + 8 * (b & 1)
        if b + 1 < 9:
            a(f"{MF} {v(S(b+1),16)}, {v(KF+4*(b+1),4)}, {QF}, {v(CO,16) if b+1==8 else '0'}")
        if b == 0: a("s_waitcnt lgkmcnt(2)")
        for i in range(2): a(f"v_exp_f32 v{s_+i}, v{s_+i}")
        if b > 0:
            pv = VB + 8 * ((b - 1) & 1)
            a(f"{MF} {v(OA,16)}, {v(pv+4,4)}, {v(PP+4,4)}, {v(OA,16)}")
        for i in range(2, 8): a(f"v_exp_f32 v{s_+i}, v{s_+i}")
        if b + 1 < 9: rdV(b + 1)
        for i in range(4): a(f"v_cvt_pk_bf16_f32 v{PP+i}, v{s_+2*i}, v{s_+2*i+1}")
        for i in range(8, 10): a(f"v_exp_f32 v{s_+i}, v{s_+i}")
        a(f"s_waitcnt lgkmcnt({2 if b+1<9 else 0})")
        a(f"{MF} {v(OA,16)}, {v(vb,4)}, {v(PP,4)}, {'0' if b==0 else v(OA,16)}")
        for i in range(10, 16): a(f"v_exp_f32 v{s_+i}, v{s_+i}")
        if b < 8: pload(2 * b); pload(2 * b + 1)
        for i in range(4, 8): a(f"v_cvt_pk_bf16_f32 v{PP+i}, v{s_+2*i}, v{s_+2*i+1}")
        if b + 1 < 9:
            le = a.uid(f"ex{b}"); exits.append((b, le))
            a(f"s_cmp_eq_u32 s30, {b+1}"); a(f"s_cbranch_scc1 {le}")
    a(f"{MF} {v(OA,16)}, {v(VB+4,4)}, {v(PP+4,4)}, {v(OA,16)}")
    a.label(ldone)
    def cold_exits():
        chain = [a.uid(f"pl{i}") for i in range(9)]
        for b, le in exits:
            a.label(le)
            a(f"{MF} {v(OA,16)}, {v(VB+8*(b&1)+4,4)}, {v(PP+4,4)}, {v(OA,16)}")
            a(f"s_branch {chain[b+1]}")
        for i in range(1, 9):
            a.label(chain[i])
            if i < 8: pload(2 * i); pload(2 * i + 1)
        a(f"s_branch {ldone}")
    cold.append(cold_exits)
    stamp(a, 10); cstamp(a, 11)
    a(f"s_lshl_b32 s32, s{S_Q}, 5"); a(f"s_lshl_b32 s33, s{S_G}, 1"); a("s_add_u32 s32, s32, s33")
    a("s_add_u32 s32, s32, s26"); a("s_lshl_b32 s32, s32, 10"); a(f"s_add_u32 s32, s32, s{S_O}")
    lfb, lfin = a.uid("fallback"), a.uid("afin")
    def finish(check):
        a(f"v_rcp_f32 v10, v{OA+8}")
        if check:
            a(f"v_mov_b32 v4, {f32hex(2.0**-40)}")
            a(f"v_mov_b32 v5, {f32hex(2.0**40)}")
            a(f"v_med3_f32 v4, v{OA+8}, v4, v5")
            a(f"v_cmp_neq_f32 s[34:35], v4, v{OA+8}")
        a("v_mov_b32 v11, v10")
        for i in range(4): a(f"v_pk_mul_f32 {v(OA+2*i,2)}, {v(OA+2*i,2)}, v[10:11]")
        if check:
            a(f"v_add_f32 v4, |v{OA}|, |v{OA+1}|")
            a(f"v_add_f32 v5, |v{OA+2}|, |v{OA+3}|")
            for i in range(4, 8): a(f"v_add_f32 v{4+(i&1)}, |v{OA+i}|, v{4+(i&1)}")
            a(f"v_add_f32 v4, v4, v5")
            a(f"v_cmp_class_f32 vcc, v4, s49")
            a("s_or_b64 vcc, vcc, s[34:35]")
            a(f"s_cbranch_vccnz {lfb}")
    finish(True)
    a.label(lfin)
    for i in range(4): a(f"v_cvt_pk_bf16_f32 v{OA+i}, v{OA+2*i}, v{OA+2*i+1}")
    a("s_waitcnt vmcnt(17)")
    a(f"buffer_store_dwordx4 {v(OA,4)}, v6, {W}, s32 offen sc1")
    def cold_fb():
        a.label(lfb)
        d1, d2 = a.uid("f1"), a.uid("f2")
        C = lambda b: v(CD, 16) if b == 0 else v(CO, 16) if b == 8 else "0"
        for b in range(9):
            a(f"{MF} {v(S0,16)}, {v(KF+4*b,4)}, {QF}, {C(b)}")
            for i in range(8):
                if b == 0 and i == 0: a(f"v_max_f32 v15, v{S0}, v{S0+1}")
                else: a(f"v_max3_f32 v15, v{S0+2*i}, v{S0+2*i+1}, v15")
            if b < 8: a(f"s_cmp_eq_u32 s30, {b+1}"); a(f"s_cbranch_scc1 {d1}")
        a.label(d1)
        a("v_mov_b32 v11, v15")
        a("v_permlane32_swap_b32 v15, v11")
        a("v_max_f32 v15, v15, v11")
        a("s_waitcnt lgkmcnt(0)")
        for b in range(9):
            a(f"{MF} {v(S0,16)}, {v(KF+4*b,4)}, {QF}, {C(b)}")
            a(f"v_add_u32 v4, s{40+b}, v9")
            a("s_mov_b64 exec, s[38:39]")
            a(f"ds_read_b128 {v(VB,4)}, v4")
            a(f"ds_read_b128 {v(VB+4,4)}, v4 offset:1024")
            a("s_mov_b64 exec, -1")
            for i in range(16): a(f"v_sub_f32 v{S0+i}, v{S0+i}, v15")
            for i in range(16): a(f"v_exp_f32 v{S0+i}, v{S0+i}")
            for i in range(8): a(f"v_cvt_pk_bf16_f32 v{PP+i}, v{S0+2*i}, v{S0+2*i+1}")
            a("s_waitcnt lgkmcnt(0)")
            a(f"{MF} {v(OA,16)}, {v(VB,4)}, {v(PP,4)}, {'0' if b==0 else v(OA,16)}")
            a(f"{MF} {v(OA,16)}, {v(VB+4,4)}, {v(PP+4,4)}, {v(OA,16)}")
            if b < 8: a(f"s_cmp_eq_u32 s30, {b+1}"); a(f"s_cbranch_scc1 {d2}")
        a.label(d2)
        finish(False)
        a(f"s_branch {lfin}")
    cold.append(cold_fb)

def phase_p(a, lend):
    OP, FB, ACC, T = 32, 48, 80, 48
    a("s_waitcnt lgkmcnt(0)")
    a("s_barrier")
    stamp(a, 11)
    l2, lc = a.uid("p2"), a.uid("pc")
    a(f"s_lshl_b32 s33, s{S_PS}, 15"); a("s_lshl_b32 s34, s24, 12"); a("s_add_u32 s33, s33, s34")
    a(f"s_add_u32 s33, s33, s{S_O}")
    a("s_lshr_b32 s34, s24, 1"); a("s_lshl_b32 s34, s34, 14"); a("s_and_b32 s35, s24, 1"); a("s_lshl_b32 s35, s35, 12")
    a("s_add_u32 s34, s34, s35"); a(f"s_add_u32 s34, s34, {L_STG+8192}")
    a("v_add_u32 v5, s34, v6")
    a("v_lshlrev_b32 v12, 9, v14"); a("v_lshl_or_b32 v12, v13, 4, v12")
    a(f"v_add_u32 v12, {L_STG+8192}, v12")
    rd = lambda ks, t, d: a(f"ds_read_b128 {v(d,4)}, v12 offset:{(ks>>2)*RG + (ks&3)*2048 + t*256}")
    def poll(extra_issue, extra_chk):
        lp = a.uid("opoll")
        a.label(lp)
        if DEBUG: a("s_add_u32 s97, s97, 1")
        for i in range(4): a(f"buffer_load_dwordx4 {v(OP+4*i,4)}, v6, {W}, s33 offen offset:{i*1024} sc1")
        extra_issue()
        a("s_waitcnt vmcnt(0)")
        a(f"v_max_u32 v4, v{OP}, v{OP+1}")
        for i in range(1, 8): a(f"v_max3_u32 v4, v{OP+2*i}, v{OP+2*i+1}, v4")
        extra_chk()
        a("v_cmp_eq_u32 vcc, -1, v4")
        spin_check(a, lp)
        for i in range(4): a(f"ds_write_b128 v5, {v(OP+4*i,4)} offset:{i*1024}")
    a(f"s_cmp_lg_u32 s{S_L}, 0"); a(f"s_cbranch_scc1 {l2}")
    a("s_sub_u32 s39, s61, 6144")
    planar_pre(a, 7, 8, 9, 10, 11, 39, S_CG, 4, L_SUM)
    a("v_bfe_u32 v4, v1, 2, 2"); a("v_lshl_add_u32 v4, v14, 2, v4"); a("v_lshlrev_b32 v4, 6, v4")
    a("v_and_b32 v15, 3, v1"); a("v_lshl_or_b32 v4, v15, 3, v4"); a("v_add_u32 v4, s61, v4")
    a("s_waitcnt vmcnt(19)")
    a(f"ds_read_b64_tr_b16 {v(T,2)}, v4")
    a(f"ds_read_b64_tr_b16 {v(T+2,2)}, v4 offset:32")
    lnc = a.uid("nocc")
    a("s_cmp_ge_u32 s24, 4"); a(f"s_cbranch_scc1 {lnc}")
    c_consts(a)
    a(f"s_branch {lnc}_j")
    a.label(lnc)
    a("s_mov_b32 s63, s33"); a("s_mov_b32 s62, s34")
    touch(a, W, WOF, 1, 16)
    touch(a, GT_, 0, 1, 17)
    a("s_mov_b32 s33, s63"); a("s_mov_b32 s34, s62"); a("s_mov_b32 s62, 0")
    a.label(lnc + "_j")
    a(f"s_lshl_b32 s35, s{S_CG}, 3"); a("s_add_u32 s35, s35, s24"); a("s_lshl_b32 s35, s35, 10")
    a(f"s_lshl_b32 s32, s{S_PS}, 15"); a("s_add_u32 s35, s35, s32"); a(f"s_add_u32 s35, s35, {T2}")
    a("s_waitcnt lgkmcnt(0)")
    for i in range(4):
        a(f"v_lshlrev_b32 v{ACC+2*i}, 16, v{T+i}")
        a(f"v_and_b32 v{ACC+2*i+1}, 0xffff0000, v{T+i}")
    poll(lambda: None, lambda: None)
    a("s_waitcnt lgkmcnt(0)")
    stamp(a, 12)
    a("s_barrier")
    g16(a, PB, rd, 1, True, ACC, False, FB)
    planar_epi(a, ACC, 7, 8, 9, 10, 11, OP, 35, "sc1")
    stats_out(a, L_SUM, S_CG, S_PS, ST2, OP)
    a(f"s_branch {lc}")
    a.label(l2)
    a("v_lshlrev_b32 v7, 10, v13"); a("v_lshl_or_b32 v7, v14, 3, v7")
    a("v_add_u32 v8, 16384, v7")
    a(f"s_lshl_b32 s35, s{S_PS}, 15"); a(f"s_lshl_b32 s32, s{S_CG}, 8"); a("s_add_u32 s35, s35, s32")
    a("s_lshl_b32 s32, s24, 5"); a("s_add_u32 s35, s35, s32")
    a(f"s_lshl_b32 s32, s{S_CG}, 3"); a("s_add_u32 s32, s32, s24"); a("s_lshl_b32 s32, s32, 10")
    a(f"s_lshl_b32 s30, s{S_PS}, 15"); a("s_add_u32 s32, s32, s30"); a(f"s_add_u32 s32, s32, {X3B}")
    a("v_lshlrev_b32 v9, 5, v13"); a("v_lshl_or_b32 v9, v14, 3, v9")
    poll(lambda: None, lambda: None)
    a("s_waitcnt lgkmcnt(0)")
    stamp(a, 12)
    a("s_barrier")
    a(f"buffer_load_dwordx2 {v(OP,2)}, v9, {W}, s32 offen sc1")
    a(f"buffer_load_dwordx2 {v(OP+2,2)}, v9, {W}, s32 offen offset:512 sc1")
    g16(a, PB, rd, 1, True, ACC, True, FB)
    a("s_waitcnt vmcnt(0)")
    for i in range(4):
        a(f"v_lshlrev_b32 v{OP+4+2*i}, 16, v{OP+i}")
        a(f"v_and_b32 v{OP+5+2*i}, 0xffff0000, v{OP+i}")
    for i in range(8): a(f"v_add_f32 v{ACC+i}, v{ACC+i}, v{OP+4+i}")
    for t in range(2):
        a(f"v_cvt_pk_bf16_f32 v{OP+2*t}, v{ACC+4*t}, v{ACC+4*t+1}")
        a(f"v_cvt_pk_bf16_f32 v{OP+2*t+1}, v{ACC+4*t+2}, v{ACC+4*t+3}")
        a(f"buffer_store_dwordx2 {v(OP+2*t,2)}, v{7+t}, s[{SRD_O}:{SRD_O+3}], s35 offen")
    a(f"s_branch {lend}")
    a.label(lc)

def k_mega(a, name):
    kernel_head(a, name)
    end = name + "_end"; lend = a.uid("fin")
    cold = []
    a("s_cmp_ge_u32 s2, 256"); a(f"s_cbranch_scc1 {end}")
    stamp_init(a)
    a(f"s_load_dwordx2 s[36:37], s[0:1], {KA_WS}")
    a(f"s_load_dwordx2 s[4:5], s[0:1], {KA_OUT}")
    code_prefetch(a, name, end, 4, 87)
    lane_ids(a)
    table_srd(a, SRD_B, "ctab", CTAB_SIZE)
    table_srd(a, SRD_A, "gtab", 0x80000)
    a(f"s_and_b32 s{S_RB}, s2, 6"); a(f"s_lshl_b32 s{S_RB}, s{S_RB}, 1")
    a(f"s_lshr_b32 s{S_G}, s2, 6"); a(f"s_add_u32 s{S_RB}, s{S_RB}, s{S_G}")
    a(f"s_bfe_u32 s{S_G}, s2, 0x30003")
    a("s_and_b32 s32, s2, 1"); a("s_lshl_b32 s32, s32, 3"); a(f"s_add_u32 s{S_G}, s{S_G}, s32")
    a(f"s_lshl_b32 s{S_Q}, s{S_RB}, 2")
    a(f"s_lshr_b32 s{S_PS}, s{S_G}, 2"); a(f"s_add_u32 s{S_PS}, s{S_PS}, s{S_Q}")
    a(f"s_and_b32 s{S_CG}, s{S_G}, 3")
    a(f"s_add_u32 s{S_Q}, s{S_Q}, s25")
    a(f"s_mov_b32 s{S_TIN}, {T0}"); a(f"s_mov_b32 s{S_TOUT}, {T1}"); a(f"s_mov_b32 s{S_ST}, {ST0}")
    a(f"s_mov_b32 s{S_KV}, {KV1}"); a(f"s_mov_b32 s{S_O}, {O1}"); a(f"s_mov_b32 s{S_L}, 0")
    a(f"s_mov_b32 s{S_SPIN}, {SPIN}")
    attn_bases(a)
    a("s_waitcnt lgkmcnt(0)")
    stamp(a, 1)
    mk_srd(a, SRD_WS, 36, WS_SIZE); mk_srd(a, SRD_O, 4, 0x200000)
    lloop, lh, latt = a.uid("layer"), a.uid("helper"), a.uid("attn")
    a("s_mov_b32 s62, 1")
    a.label(lloop)
    lskip = a.uid("cskip")
    def first():
        ln, lhh = a.uid("nfirst"), a.uid("firsth")
        a("s_cmp_eq_u32 s62, 0"); a(f"s_cbranch_scc1 {ln}")
        a("s_mov_b32 s62, 0")
        a("s_cmp_ge_u32 s24, 4"); a(f"s_cbranch_scc1 {lhh}")
        a("s_mov_b32 s63, s31")
        c_consts(a)
        a("s_mov_b32 s31, s63")
        masks_(a)
        a(f"s_branch {ln}")
        a.label(lhh)
        masks_(a)
        a("s_waitcnt vmcnt(0)")
        a(f"s_branch {lskip}")
        a.label(ln)
    phase_c(a, first, lskip)
    a("s_cmp_ge_u32 s24, 4"); a(f"s_cbranch_scc1 {lh}")
    phase_c_compute(a)
    phase_q_m(a, cold)
    a(f"s_branch {latt}")
    a.label(lh)
    lnb = a.uid("nob")
    a(f"s_cmp_lg_u32 s{S_L}, 0"); a(f"s_cbranch_scc1 {lnb}")
    a("s_lshl_b32 s33, s25, 13")
    a(f"s_lshl_b32 s34, s{S_G}, 15"); a("s_add_u32 s34, s34, s33")
    btile_dma(a, W, 34, WP + 16 * 32768, L_BK)
    btile_dma(a, W, 34, WP + 32 * 32768, L_BV)
    btile_dma(a, W, 34, WP, L_BQ)
    a.label(lnb)
    a("s_barrier")
    a("s_barrier")
    phase_q_h(a, cold)
    a.label(latt)
    phase_attn(a, cold)
    phase_p(a, lend)
    if DEBUG:
        stamp_out(a, 1)
        for i in range(1, 14): a(f"s_mov_b64 s[{64+2*i}:{65+2*i}], 0")
        a("s_memrealtime s[92:93]"); a("s_memrealtime s[64:65]"); a("s_mov_b64 exec, -1"); a("s_mov_b64 s[96:97], 0")
    a(f"s_mov_b32 s{S_TIN}, {T2}"); a(f"s_mov_b32 s{S_TOUT}, {T3}"); a(f"s_mov_b32 s{S_ST}, {ST2}")
    a(f"s_mov_b32 s{S_KV}, {KV2}"); a(f"s_mov_b32 s{S_O}, {O2}"); a(f"s_mov_b32 s{S_L}, 1")
    a(f"s_branch {lloop}")
    for c in list(cold): c()
    a.label(lend)
    stamp_out(a, 2)
    a.label(end); a("s_endpgm")
    return kd(name, 256), MEGA_LDS
```

```python
import sys
from common2 import *
from init import k_init
from mega import k_mega
HDR = open("interleave_layers__spectral_gfnet__sliding_block__prompt.s.ref").read().split("; Override launch")[0]
def build(path):
    a = Asm()
    ks = [("init_kernel", 512) + k_init(a, "init_kernel"), ("mega_kernel", 256) + k_mega(a, "mega_kernel")]
    a.lines = fix_hazards(a.lines)
    s = HDR
    for n, g, d, lds in ks: s += f"; @launch kernel={n} grid=({g},1,1) block=(512,1,1) lds={lds}\n"
    s += '.amdgcn_target "amdgcn-amd-amdhsa--gfx950"\n.text\n' + a.text()
    s += '.section .rodata,"a"\n'
    for n, g, d, lds in ks: s += d
    s += tables2_text()
    open(path, "w").write(s)
if __name__ == "__main__":
    build(sys.argv[1])
```

```python
from common import *
import common
X3B = 0x1C00000
M16 = "v_mfma_f32_16x16x32_bf16"
MF = "v_mfma_f32_32x32x16_bf16"
W = f"s[{SRD_WS}:{SRD_WS+3}]"

def lane_ids(a):
    wave_ids(a)
    a("v_lshlrev_b32 v6, 4, v1")
    a("v_and_b32 v13, 15, v1")
    a("v_lshrrev_b32 v14, 4, v1")

def g16(a, RB, rd, per, regs_is_A, acc, zero_init, FB, nbuf=8, vmwait=None):
    steps = [(ks, t) for ks in range(16) for t in range(2)]
    depth = min(nbuf - 1, 15 // per)
    for i in range(depth): rd(*steps[i], FB + 4 * (i % nbuf))
    for i, (ks, t) in enumerate(steps):
        rem = min(depth - 1, len(steps) - 1 - i)
        w = f"lgkmcnt({rem*per})"
        if vmwait is not None and t == 0: w = f"vmcnt({vmwait(ks)}) " + w
        a(f"s_waitcnt {w}")
        A, B = v(RB + 4 * ks, 4), v(FB + 4 * (i % nbuf), 4)
        if not regs_is_A: A, B = B, A
        c = "0" if (zero_init and ks == 0) else v(acc + 4 * t, 4)
        a(f"{M16} {v(acc+4*t,4)}, {A}, {B}, {c}")
        if i + depth < len(steps): rd(*steps[i + depth], FB + 4 * ((i + depth) % nbuf))

def planar_pre(a, vwr, vrd, vsum, vfac, vout, s_scr, s_cg, tmp, l_sum):
    a(f"v_lshlrev_b32 v{vwr}, 5, v13")
    a(f"v_lshl_or_b32 v{vwr}, v14, 3, v{vwr}")
    a(f"v_add_u32 v{vwr}, s{s_scr}, v{vwr}")
    a(f"v_bfe_u32 v{vrd}, v1, 2, 2")
    a(f"v_lshl_add_u32 v{vrd}, v14, 3, v{vrd}")
    a(f"v_lshlrev_b32 v{vrd}, 5, v{vrd}")
    a(f"v_and_b32 v{tmp}, 3, v1")
    a(f"v_lshl_or_b32 v{vrd}, v{tmp}, 3, v{vrd}")
    a(f"v_add_u32 v{vrd}, s{s_scr}, v{vrd}")
    a(f"v_lshlrev_b32 v{vsum}, 5, v2")
    a("s_lshl_b32 s32, s24, 2")
    a(f"s_add_u32 s32, s32, {l_sum}")
    a(f"v_add_u32 v{vsum}, s32, v{vsum}")
    a(f"s_or_b32 s32, s{s_cg}, s24")
    a(f"v_or_b32 v{tmp}, s32, v14")
    a(f"v_min_u32 v{tmp}, 1, v{tmp}")
    a(f"v_cvt_f32_u32 v{vfac}, v{tmp}")
    a(f"v_lshlrev_b32 v{vout}, 6, v13")
    a(f"v_lshl_or_b32 v{vout}, v14, 4, v{vout}")

def planar_epi(a, acc, vwr, vrd, vsum, vfac, vout, T, s_out, flags):
    for st in range(2):
        x = acc + 4 * st
        a(f"v_cvt_pk_bf16_f32 v{T+2*st}, v{x}, v{x+1}")
        a(f"v_cvt_pk_bf16_f32 v{T+2*st+1}, v{x+2}, v{x+3}")
        a(f"ds_write_b64 v{vwr}, {v(T+2*st,2)} offset:{st*512}")
    for st in range(2):
        x = acc + 4 * st
        a(f"v_mul_f32 v{T+4+st}, v{x}, v{vfac}")
        a(f"v_mul_f32 v{T+4+st}, v{T+4+st}, v{x}")
        for r in range(1, 4): a(f"v_fmac_f32 v{T+4+st}, v{x+r}, v{x+r}")
    a("s_waitcnt lgkmcnt(0)")
    a(f"ds_read_b64_tr_b16 {v(T,2)}, v{vrd}")
    a(f"ds_read_b64_tr_b16 {v(T+2,2)}, v{vrd} offset:128")
    a(f"v_permlane16_swap_b32 v{T+4}, v{T+5}")
    a(f"v_add_f32 v{T+4}, v{T+4}, v{T+5}")
    a(f"v_mov_b32 v{T+5}, v{T+4}")
    a(f"v_permlane32_swap_b32 v{T+4}, v{T+5}")
    a(f"v_add_f32 v{T+4}, v{T+4}, v{T+5}")
    a(f"ds_write_b32 v{vsum}, v{T+4}")
    a("s_waitcnt lgkmcnt(1)")
    a(f"buffer_store_dwordx4 {v(T,4)}, v{vout}, {W}, s{s_out} offen {flags}")
    a("s_waitcnt lgkmcnt(0)")
    a("s_barrier")

def stats_out(a, l_sum, s_cg, s_blk, st_base, T):
    lsk = a.uid("sk")
    a("s_cmp_lg_u32 s24, 0"); a(f"s_cbranch_scc1 {lsk}")
    a("v_lshlrev_b32 v5, 5, v2")
    a("v_lshl_or_b32 v5, v3, 4, v5")
    a(f"v_add_u32 v5, {l_sum}, v5")
    a(f"ds_read_b128 {v(T+8,4)}, v5")
    a("v_lshlrev_b32 v4, 2, v2")
    a(f"s_lshl_b32 s32, s{s_cg}, 13"); a(f"s_lshl_b32 s33, s{s_blk}, 7"); a("s_add_u32 s32, s32, s33")
    a(f"s_add_u32 s32, s32, {st_base}")
    a("s_waitcnt lgkmcnt(0)")
    a(f"v_add_f32 v{T+8}, v{T+8}, v{T+9}")
    a(f"v_add_f32 v{T+10}, v{T+10}, v{T+11}")
    a(f"v_add_f32 v{T+8}, v{T+8}, v{T+10}")
    a(f"v_mov_b32 v5, v{T+8}")
    a(f"v_permlane32_swap_b32 v{T+8}, v5")
    a(f"v_add_f32 v5, v{T+8}, v5")
    a(f"buffer_store_dword v5, v4, {W}, s32 offen sc1")
    a.label(lsk)

def tables2_text():
    s = ""
    for m in range(512): s += f".set ct{m}, {bf16(np.cos(2*np.pi*m/512)/16)}\n"
    old = common.tables_text()
    g0 = old.index(".p2align 8\ngtab:");
    s += """.altmacro
.macro em8 a,b,c,d,e,f,g,h
.short ct\\a,ct\\b,ct\\c,ct\\d,ct\\e,ct\\f,ct\\g,ct\\h
.endm
"""
    s += old[g0:old.index(".p2align 8\nctab:")]
    return s
CTAB_SIZE = 20480 + 32768
```

```python
from common2 import *
INIT_LDS = 65536 + 8192 + 1024
L_X, L_W, L_SCR, L_SUM, L_WOF = 0, 32768, 65536, 73728, 0
def gen_f(a, RB):
    X, Y = 32, 40
    a("s_lshl_b32 s32, s34, 4")
    a("v_add_u32 v4, s32, v13")
    a("v_lshrrev_b32 v5, 1, v4")
    a("v_and_b32 v7, 1, v4")
    a("v_cmp_eq_u32 vcc, 0, v5")
    a("v_lshlrev_b32 v8, 8, v7")
    a("v_cndmask_b32 v5, v5, v8, vcc")
    a("v_lshlrev_b32 v7, 7, v7")
    a("v_mov_b32 v8, 64")
    a("v_cndmask_b32 v7, v7, v8, vcc")
    a("v_lshlrev_b32 v8, 3, v14")
    a("v_mad_u32_u24 v7, v5, v8, v7")
    a("v_lshlrev_b32 v9, 5, v5")
    a(f"v_mov_b32 v10, {f32hex(1/512)}")
    a("v_and_b32 v8, 511, v9"); a("v_cvt_f32_u32 v8, v8"); a("v_mul_f32 v8, v8, v10")
    a("v_cos_f32 v11, v8")
    a("v_add_u32 v9, v9, v7")
    a("v_add_f32 v11, v11, v11")
    for R, st in ((X, 7), (Y, 9)):
        for i in range(8):
            a(f"v_and_b32 v8, 511, v{st}")
            a("v_cvt_f32_u32 v8, v8")
            a("v_mul_f32 v8, v8, v10")
            a(f"v_cos_f32 v{R+i}, v8")
            if i < 7: a(f"v_add_u32 v{st}, v{st}, v5")
        for i in range(8): a(f"v_mul_f32 v{R+i}, {f32hex(1/16)}, v{R+i}")
    for ks in range(16):
        R = X if ks % 2 == 0 else Y
        O = Y if ks % 2 == 0 else X
        if ks >= 2:
            for i in range(8): a(f"v_fma_f32 v{R+i}, v11, v{O+i}, -v{R+i}")
        for i in range(4): a(f"v_cvt_pk_bf16_f32 v{RB+4*ks+i}, v{R+2*i}, v{R+2*i+1}")

def k_init(a, name):
    kernel_head(a, name)
    end = name + "_end"
    laux = a.uid("aux")
    a("s_cmp_ge_u32 s2, 512"); a(f"s_cbranch_scc1 {end}")
    stamp_init(a)
    a(f"s_load_dwordx2 s[4:5], s[0:1], {KA_X}")
    a(f"s_load_dwordx4 s[40:43], s[0:1], {KA_WQKV}")
    a(f"s_load_dwordx4 s[44:47], s[0:1], {KA_WR}")
    a(f"s_load_dwordx2 s[36:37], s[0:1], {KA_WS}")
    code_prefetch(a, name, end, 4, 31)
    lane_ids(a)
    a("s_cmp_ge_u32 s2, 256"); a(f"s_cbranch_scc1 {laux}")
    a("s_and_b32 s28, s2, 7"); a("s_lshl_b32 s28, s28, 3"); a("s_lshr_b32 s29, s2, 5"); a("s_add_u32 s28, s28, s29")
    a("s_bfe_u32 s29, s2, 0x20003")
    RB, FB, ACC, T = 64, 32, 16, 24
    a("s_lshl_b32 s34, s29, 3"); a("s_add_u32 s34, s34, s24")
    a("s_add_u32 s48, s29, s24"); a("s_and_b32 s48, s48, 3")
    def rows_dma(srd, lbase, sblk_sgpr):
        a("s_lshl_b32 s30, s48, 3")
        a(f"s_lshl_b32 s31, s{sblk_sgpr}, 15")
        for i in range(8):
            a(f"s_add_u32 s32, s30, {i}")
            a("s_and_b32 s35, s32, 15")
            a("v_xor_b32 v4, s35, v1")
            a("v_lshlrev_b32 v4, 4, v4")
            a("s_lshl_b32 s32, s32, 10")
            a("s_add_u32 s35, s32, s31")
            a(f"s_add_u32 m0, s32, {lbase}")
            a(f"buffer_load_dwordx4 v4, s[{srd}:{srd+3}], s35 offen lds")
    lhi, lgo = a.uid("hi"), a.uid("go")
    a("s_sub_u32 s38, s28, 48")
    a("s_cmp_ge_u32 s24, 4"); a(f"s_cbranch_scc1 {lhi}")
    a("s_waitcnt lgkmcnt(0)")
    stamp(a, 1)
    lt0, lt1 = a.uid("t0"), a.uid("t1")
    a("s_cmp_lg_u32 s24, 0"); a(f"s_cbranch_scc1 {lt1}")
    a("s_and_b32 s32, s2, 7"); a("s_lshr_b32 s33, s2, 3")
    a("s_cmp_ge_u32 s32, 6"); a(f"s_cbranch_scc1 {lt0}")
    mk_srd(a, SRD_A, 40, 512 * 3072)
    a("v_lshrrev_b32 v4, 2, v1"); a("v_mul_u32_u24 v4, 3072, v4")
    a("v_and_b32 v5, 3, v1"); a("v_lshl_add_u32 v4, v5, 7, v4")
    a(f"s_mul_i32 s33, s33, {16*3072}"); a("s_lshl_b32 s32, s32, 9"); a("s_add_u32 s33, s33, s32")
    a(f"buffer_load_dword v26, v4, s[{SRD_A}:{SRD_A+3}], s33 offen")
    a(f"s_branch {lt1}")
    a.label(lt0)
    mk_srd(a, SRD_A, 42, 512 * 1024)
    a("v_lshlrev_b32 v4, 7, v1")
    a("s_sub_u32 s32, s32, 6"); a("s_lshl_b32 s32, s32, 18"); a("s_lshl_b32 s33, s33, 13"); a("s_add_u32 s33, s33, s32")
    a(f"buffer_load_dword v26, v4, s[{SRD_A}:{SRD_A+3}], s33 offen")
    a.label(lt1)
    mk_srd(a, SRD_A, 4, 0x200000)
    rows_dma(SRD_A, L_X, 28)
    a.label(lhi)
    stamp(a, 6)
    gen_f(a, RB)
    a("s_waitcnt lgkmcnt(0)")
    mk_srd(a, SRD_WS, 36, WS_SIZE)
    a("s_cmp_lt_u32 s24, 4"); a(f"s_cbranch_scc1 {lgo}")
    lwo, lj = a.uid("wo"), a.uid("wj")
    a("s_cmp_ge_u32 s28, 48"); a(f"s_cbranch_scc1 {lwo}")
    mk_srd(a, SRD_A, 40, 512 * 3072)
    a("v_lshrrev_b32 v4, 2, v1")
    a("v_mul_u32_u24 v4, 3072, v4")
    a("v_and_b32 v5, 3, v1")
    a("v_lshl_add_u32 v4, v5, 4, v4")
    a(f"s_mul_i32 s33, s48, {128*3072}")
    a("s_lshl_b32 s31, s28, 6"); a("s_add_u32 s33, s33, s31")
    a("s_lshl_b32 s32, s48, 13")
    for i in range(8):
        a(f"s_add_u32 m0, s32, {L_W + i*1024}")
        a(f"buffer_load_dwordx4 v4, s[{SRD_A}:{SRD_A+3}], s33 offen lds")
        if i < 7: a(f"s_add_u32 s33, s33, {16*3072}")
    a(f"s_branch {lj}")
    a.label(lwo)
    mk_srd(a, SRD_A, 42, 512 * 1024)
    rows_dma(SRD_A, L_W, 38)
    a.label(lj)
    a.label(lgo)
    a("s_lshl_b32 s39, s24, 10"); a(f"s_add_u32 s39, s39, {L_SCR}")
    planar_pre(a, 7, 8, 9, 10, 11, 39, 29, 4, L_SUM)
    AD = 60
    a("v_xor_b32 v4, v13, v14")
    a("v_lshlrev_b32 v4, 4, v4")
    a(f"v_lshl_or_b32 v{AD}, v13, 10, v4")
    for b in range(1, 4): a(f"v_xor_b32 v{AD+b}, {b<<6}, v{AD}")
    rd_rows = lambda base: (lambda ks, t, d: a(f"ds_read_b128 {v(d,4)}, v{AD+(ks&3)} offset:{base + t*16384 + (ks>>2)*256}"))
    a("s_lshl_b32 s35, s34, 10"); a("s_lshl_b32 s32, s28, 15"); a("s_add_u32 s35, s35, s32")
    if T0: a(f"s_add_u32 s35, s35, {T0}")
    stamp(a, 2)
    if "nog1" in os.environ.get("KX", ""): a("s_endpgm")
    lw = a.uid("nw")
    a("s_cmp_ge_u32 s24, 4"); a(f"s_cbranch_scc1 {lw}")
    a("s_waitcnt vmcnt(0)")
    a.label(lw)
    a("s_barrier")
    stamp(a, 3)
    g16(a, RB, rd_rows(L_X), 1, True, ACC, True, FB, nbuf=7)
    stamp(a, 4)
    a("s_waitcnt vmcnt(0)")
    planar_epi(a, ACC, 7, 8, 9, 10, 11, T, 35, "sc1")
    stamp(a, 5)
    stats_out(a, L_SUM, 29, 28, ST0, T)
    stamp(a, 7)
    if "nog2" in os.environ.get("KX", ""): a("s_endpgm")
    lwo2, lfin = a.uid("wo2"), a.uid("fin")
    a("v_lshrrev_b32 v5, 1, v14"); a("v_lshlrev_b32 v5, 3, v5")
    a("v_and_b32 v4, 1, v14")
    a("s_cmp_ge_u32 s28, 48"); a(f"s_cbranch_scc1 {lwo2}")
    a("v_bfe_u32 v7, v1, 2, 2")
    a("v_lshl_add_u32 v7, v14, 3, v7")
    a("v_lshlrev_b32 v7, 6, v7")
    a("v_and_b32 v8, 3, v1")
    a("v_lshl_or_b32 v7, v8, 3, v7")
    def rd_tr(ks, t, d):
        o = L_W + ks * 2048 + t * 32
        a(f"ds_read_b64_tr_b16 {v(d,2)}, v7 offset:{o}")
        a(f"ds_read_b64_tr_b16 {v(d+2,2)}, v7 offset:{o+256}")
    a("v_lshl_or_b32 v4, v4, 5, v13"); a("v_lshl_or_b32 v11, v4, 4, v5")
    a("s_lshl_b32 s35, s28, 5"); a("s_add_u32 s35, s35, s34"); a("s_lshl_b32 s35, s35, 10")
    a(f"s_add_u32 s35, s35, {WP}")
    g16(a, RB, rd_tr, 2, True, ACC, True, FB, nbuf=7)
    for t in range(2):
        a(f"v_cvt_pk_bf16_f32 v{T+4+2*t}, v{ACC+4*t}, v{ACC+4*t+1}")
        a(f"v_cvt_pk_bf16_f32 v{T+5+2*t}, v{ACC+4*t+2}, v{ACC+4*t+3}")
        a(f"buffer_store_dwordx2 {v(T+4+2*t,2)}, v11, {W}, s35 offen offset:{t*256} nt")
    a(f"s_branch {lfin}")
    a.label(lwo2)
    a("v_lshl_or_b32 v4, v4, 4, v13"); a("v_lshl_or_b32 v11, v4, 4, v5")
    a("s_lshl_b32 s35, s34, 4"); a("s_add_u32 s35, s35, s38"); a("s_lshl_b32 s35, s35, 10")
    a(f"s_add_u32 s35, s35, {WOP}")
    g16(a, RB, rd_rows(L_W), 1, False, ACC, True, FB, nbuf=7)
    for t in range(2):
        a(f"v_cvt_pk_bf16_f32 v{T+4+2*t}, v{ACC+4*t}, v{ACC+4*t+1}")
        a(f"v_cvt_pk_bf16_f32 v{T+5+2*t}, v{ACC+4*t+2}, v{ACC+4*t+3}")
        a(f"buffer_store_dwordx2 {v(T+4+2*t,2)}, v11, {W}, s35 offen offset:{t*512} nt")
    a.label(lfin)
    stamp(a, 8)
    stamp_out(a, 0)
    a("s_endpgm")
    a.label(laux)
    X = os.environ.get("KX", "")
    if "noaux" in X: a("s_endpgm")
    a("s_sub_u32 s2, s2, 256")
    a("s_waitcnt lgkmcnt(0)")
    mk_srd(a, SRD_WS, 36, WS_SIZE)
    if "ffirst" in X:
        lnf = a.uid("nf")
        if "nofill" in X: a(f"s_branch {lnf}")
        for i in range(4): a(f"v_mov_b32 v{44+i}, -1")
        a("v_lshlrev_b32 v4, 4, v0")
        a("s_lshl_b32 s32, s2, 13")
        a(f"s_add_u32 s33, s32, {T1}")
        a(f"buffer_store_dwordx4 v[44:47], v4, {W}, s33 offen sc1")
        if "f3" in X: a(f"s_add_u32 s33, s32, {T2}")
        if "f3" in X: a(f"buffer_store_dwordx4 v[44:47], v4, {W}, s33 offen sc1")
        a("s_lshl_b32 s33, s2, 7"); a(f"s_add_u32 s33, s33, {ST2}")
        a("s_mov_b64 exec, 0xff")
        a(f"buffer_store_dwordx4 v[44:47], v6, {W}, s33 offen sc1")
        a("s_mov_b64 exec, -1")
        if "f3" in X: a(f"s_add_u32 s33, s32, {O1}")
        if "f3" in X: a(f"buffer_store_dwordx4 v[44:47], v4, {W}, s33 offen sc1")
        for i in range(4): a(f"v_mov_b32 v{52+i}, 0")
        a("s_lshl_b32 s33, s2, 10"); a(f"s_add_u32 s33, s33, {FL1}")
        a("v_cmp_gt_u32 vcc, 64, v0")
        a("s_and_saveexec_b64 s[34:35], vcc")
        a(f"buffer_store_dwordx4 v[52:55], v4, {W}, s33 offen sc1")
        a("s_mov_b64 exec, -1")
        a.label(lnf)
        stamp(a, 6)
        if "nowt" in X: a("s_endpgm")
    mk_srd(a, SRD_O, 42, 512 * 1024)
    a("s_and_b32 s56, s24, 1")
    a("s_and_b32 s30, s2, 7"); a("s_lshl_b32 s30, s30, 1"); a("s_add_u32 s57, s30, s56")
    a("s_lshr_b32 s58, s2, 3")
    a("v_lshrrev_b32 v4, 1, v1"); a("v_lshlrev_b32 v4, 10, v4")
    a("v_and_b32 v5, 1, v1"); a("v_lshl_or_b32 v4, v5, 4, v4")
    a("s_lshl_b32 s32, s57, 15"); a("s_lshl_b32 s33, s58, 5"); a("s_add_u32 s32, s32, s33")
    a("s_lshl_b32 s59, s56, 10"); a(f"s_add_u32 s59, s59, {L_WOF}")
    a("s_mov_b32 m0, s59")
    lq = a.uid("nwd")
    a("s_cmp_ge_u32 s24, 2"); a(f"s_cbranch_scc1 {lq}")
    a(f"buffer_load_dwordx4 v4, s[{SRD_O}:{SRD_O+3}], s32 offen lds")
    a.label(lq)
    a("s_and_b32 s28, s2, 7"); a("s_lshl_b32 s28, s28, 3"); a("s_lshr_b32 s29, s2, 5"); a("s_add_u32 s28, s28, s29")
    a("s_bfe_u32 s29, s2, 0x20003")
    mk_srd(a, 52, 44, 2048 * 514); mk_srd(a, SRD_B, 46, 2048 * 514)
    a("s_lshl_b32 s32, s29, 6")
    a("v_add_u32 v24, s32, v1")
    a("v_cmp_eq_u32 vcc, 0, v24")
    a("v_mov_b32 v25, 256")
    a("v_cndmask_b32 v25, v24, v25, vcc")
    a("v_lshlrev_b32 v25, 1, v25")
    a("s_lshl_b32 s30, s28, 3"); a("s_add_u32 s30, s30, s24")
    a("s_lshr_b32 s31, s30, 7"); a("s_lshl_b32 s31, s31, 4")
    a("s_and_b32 s32, s30, 15"); a("s_add_u32 s31, s31, s32")
    a("s_bfe_u32 s32, s30, 0x30004"); a("s_lshl_b32 s32, s32, 8"); a("s_add_u32 s31, s31, s32")
    a("s_mul_i32 s39, s31, 514")
    a("s_lshl_b32 s49, s28, 7"); a(f"s_add_u32 s49, s49, {WT}")
    a("v_mul_u32_u24 v27, 144, v1")
    a("s_lshl_b32 s32, s24, 4"); a("s_add_u32 s32, s32, 4096")
    a("v_add_u32 v27, s32, v27")
    a("v_lshrrev_b32 v8, 3, v0"); a("v_and_b32 v9, 7, v0")
    a("v_mul_u32_u24 v28, 144, v8"); a("v_lshl_add_u32 v28, v9, 4, v28")
    a("s_lshl_b32 s32, s29, 6"); a("v_add_u32 v8, s32, v8")
    a("v_lshlrev_b32 v24, 13, v8"); a("v_lshl_or_b32 v24, v9, 4, v24")
    if "gfirst" in X:
        for r in range(4):
            a(f"buffer_load_ushort v{16+r}, v25, s[52:55], s39 offen")
            a(f"buffer_load_ushort v{20+r}, v25, s[{SRD_B}:{SRD_B+3}], s39 offen")
            if r < 3: a(f"s_add_u32 s39, s39, {64*514}")
    a("s_waitcnt vmcnt(%d)" % (8 if "gfirst" in X else 0))
    a("s_barrier")
    if "gfirst" not in X and "nogath" not in X:
        for r in range(4):
            a(f"buffer_load_ushort v{16+r}, v25, s[52:55], s39 offen")
            a(f"buffer_load_ushort v{20+r}, v25, s[{SRD_B}:{SRD_B+3}], s39 offen")
            if r < 3: a(f"s_add_u32 s39, s39, {64*514}")
    lnw = a.uid("nwof")
    a("s_cmp_ge_u32 s24, 2"); a(f"s_cbranch_scc1 {lnw}")
    a("v_lshrrev_b32 v4, 1, v14"); a("v_lshlrev_b32 v4, 4, v4")
    a("v_and_b32 v5, 1, v14"); a("v_lshl_or_b32 v4, v5, 2, v4")
    a("v_bfe_u32 v5, v1, 2, 2"); a("v_add_u32 v4, v4, v5")
    a("v_lshlrev_b32 v4, 5, v4")
    a("v_and_b32 v5, 3, v1"); a("v_lshl_or_b32 v4, v5, 3, v4")
    a("v_add_u32 v4, s59, v4")
    a("s_lshl_b32 s31, s58, 4"); a("s_add_u32 s31, s31, s57"); a("s_lshl_b32 s31, s31, 10")
    a(f"s_add_u32 s31, s31, {WOF}")
    a("ds_read_b64_tr_b16 v[40:41], v4")
    a("ds_read_b64_tr_b16 v[42:43], v4 offset:256")
    a("s_waitcnt lgkmcnt(0)")
    a(f"buffer_store_dwordx4 v[40:43], v6, {W}, s31 offen sc1")
    a.label(lnw)
    lpf = a.uid("npf")
    a("s_cmp_lg_u32 s24, 7"); a(f"s_cbranch_scc1 {lpf}")
    a("s_lshr_b32 s32, s2, 3")
    a("s_getpc_b64 s[6:7]")
    a.label(name + "_pc2")
    a(f"s_add_u32 s6, s6, mega_kernel-{name}_pc2")
    a("s_addc_u32 s7, s7, 0")
    a("v_lshlrev_b32 v4, 4, v1")
    a("s_lshl_b32 s33, s32, 10")
    a("v_add_u32 v4, s33, v4")
    a("v_min_u32 v4, mega_kernel_end-mega_kernel, v4")
    a("global_load_dword v49, v4, s[6:7]")
    a.label(lpf)
    if "ffirst" not in X:
        lnf = a.uid("nf")
        if "nofill" in X: a(f"s_branch {lnf}")
        for i in range(4): a(f"v_mov_b32 v{44+i}, -1")
        a("v_lshlrev_b32 v4, 4, v0")
        a("s_lshl_b32 s32, s2, 13")
        a(f"s_add_u32 s33, s32, {T1}")
        a(f"buffer_store_dwordx4 v[44:47], v4, {W}, s33 offen sc1")
        if "f3" in X: a(f"s_add_u32 s33, s32, {T2}")
        if "f3" in X: a(f"buffer_store_dwordx4 v[44:47], v4, {W}, s33 offen sc1")
        a("s_lshl_b32 s33, s2, 7"); a(f"s_add_u32 s33, s33, {ST2}")
        a("s_mov_b64 exec, 0xff")
        a(f"buffer_store_dwordx4 v[44:47], v6, {W}, s33 offen sc1")
        a("s_mov_b64 exec, -1")
        if "f3" in X: a(f"s_add_u32 s33, s32, {O1}")
        if "f3" in X: a(f"buffer_store_dwordx4 v[44:47], v4, {W}, s33 offen sc1")
        for i in range(4): a(f"v_mov_b32 v{52+i}, 0")
        a("s_lshl_b32 s33, s2, 10"); a(f"s_add_u32 s33, s33, {FL1}")
        a("v_cmp_gt_u32 vcc, 64, v0")
        a("s_and_saveexec_b64 s[34:35], vcc")
        a(f"buffer_store_dwordx4 v[52:55], v4, {W}, s33 offen sc1")
        a("s_mov_b64 exec, -1")
        a.label(lnf)
        stamp(a, 6)
        if "nowt" in X: a("s_endpgm")
    if "nogath" in X: a("s_endpgm")
    a("s_waitcnt vmcnt(%d)" % (0 if ("nofill" in X or "ffirst" in X) else (5 if "f3" in X else 3)))
    for r in range(4): a(f"v_lshl_or_b32 v{16+r}, v{20+r}, 16, v{16+r}")
    a("ds_write_b128 v27, v[16:19]")
    a("s_waitcnt lgkmcnt(0)")
    a("s_barrier")
    a("ds_read_b128 v[28:31], v28 offset:4096")
    a("s_waitcnt lgkmcnt(0)")
    a(f"buffer_store_dwordx4 v[28:31], v24, {W}, s49 offen sc1")
    if DEBUG: a("s_add_u32 s2, s2, 256")
    stamp_out(a, 0)
    a.label(end); a("s_endpgm")
    return kd(name, 128), INIT_LDS
```

```python
from common2 import *
MEGA_LDS = 163840
L_BK, L_BV, L_BQ, L_STG = 0, 32768, 65536, 98304
RG = 16384
OS = 8192
L_HALO = L_STG + 32768
L_SC = L_HALO
L_RAW = L_HALO + 8192
L_E0 = L_HALO + 16384
CS = 8192
L_SUM = L_STG + 3072
BIG = 2.0 ** 100
SPIN = 0x20000
S_RB, S_G, S_Q = 28, 29, 27
S_TIN, S_TOUT, S_ST, S_KV, S_O, S_L = 50, 51, 52, 53, 54, 55
S_PS, S_CG = 56, 57
S_SPIN = 58
CD, OA = 96, 112
CO = 128
S_QB = 63
S_AQ = 3
C64, S64, N64, C32, S32, N32, TC, TS, IC, IS, VW = 128, 136, 16, 144, 152, 24, 160, 168, 176, 184, 88
PB = 192
CT = f"s[{SRD_B}:{SRD_B+3}]"
GT_ = f"s[{SRD_A}:{SRD_A+3}]"

def gen_tw(a):
    a("s_lshl_b32 s30, s24, 4")
    a("v_add_u32 v72, s30, v13")
    a("v_cvt_f32_u32 v72, v72")
    a(f"v_mul_f32 v72, {f32hex(1/2048)}, v72")
    a("v_lshlrev_b32 v73, 2, v14")
    a("v_cvt_f32_u32 v73, v73")
    a("v_mul_f32 v73, v73, v72")
    a(f"v_mul_f32 v74, {f32hex(13.0)}, v72")
    for i in range(8):
        a(f"v_cos_f32 v{TC+i}, v73")
        a(f"v_sin_f32 v{TS+i}, v73")
        if i < 7: a(f"v_add_f32 v73, v{74 if i == 3 else 72}, v73")
    a("v_lshl_add_u32 v72, v14, 2, s30")
    a("v_cvt_f32_u32 v72, v72")
    a("v_cvt_f32_u32 v74, v13")
    a(f"v_mul_f32 v74, {f32hex(1/2048)}, v74")
    for nt in range(2):
        if nt: a(f"v_add_f32 v74, {f32hex(16/2048)}, v74")
        a("v_mul_f32 v73, v72, v74")
        for r in range(4):
            a(f"v_cos_f32 v{IC+4*nt+r}, v73")
            a(f"v_sin_f32 v{IS+4*nt+r}, v73")
            if r < 3: a("v_add_f32 v73, v74, v73")
    a(f"v_mov_b32 v72, {f32hex(1/2048)}"); a("v_mov_b32 v73, v72")
    for i in range(8): a(f"v_pk_mul_f32 {v(IC+2*i,2)}, {v(IC+2*i,2)}, v[72:73]")

def gen_mat(a):
    a("s_lshl_b32 s30, s24, 4")
    a("v_add_u32 v72, s30, v13")
    a("v_and_b32 v78, 1, v72")
    a("v_mul_u32_u24 v78, 0x8000, v78"); a("v_lshl_or_b32 v78, v78, 16, v78")
    a("v_cvt_f32_u32 v72, v72")
    a(f"v_mul_f32 v72, {f32hex(1/64)}, v72")
    a("v_lshlrev_b32 v73, 3, v14"); a("v_cvt_f32_u32 v73, v73")
    a("v_mul_f32 v73, v73, v72")
    for i in range(4):
        a("v_cos_f32 v74, v73"); a("v_sin_f32 v76, v73"); a("v_add_f32 v73, v72, v73")
        a("v_cos_f32 v75, v73"); a("v_sin_f32 v77, v73"); a("v_add_f32 v73, v72, v73")
        a(f"v_cvt_pk_bf16_f32 v{C64+i}, v74, v75"); a(f"v_cvt_pk_bf16_f32 v{S64+i}, v76, v77")
    for i in range(4):
        a(f"v_xor_b32 v{C64+4+i}, v78, v{C64+i}"); a(f"v_xor_b32 v{S64+4+i}, v78, v{S64+i}")
    a("v_cvt_f32_u32 v72, v13")
    a(f"v_mul_f32 v72, {f32hex(1/32)}, v72")
    a("v_lshlrev_b32 v73, 2, v14"); a("v_cvt_f32_u32 v73, v73")
    a("v_mul_f32 v73, v73, v72")
    a(f"v_mul_f32 v79, {f32hex(13.0)}, v72")
    for i in range(4):
        a("v_cos_f32 v74, v73"); a("v_sin_f32 v76, v73"); a("v_add_f32 v73, v72, v73")
        a("v_cos_f32 v75, v73"); a("v_sin_f32 v77, v73"); a(f"v_add_f32 v73, v{79 if i == 1 else 72}, v73")
        a(f"v_cvt_pk_bf16_f32 v{C32+i}, v74, v75"); a(f"v_cvt_pk_bf16_f32 v{S32+i}, v76, v77")
    for i in range(4):
        a(f"v_xor_b32 v{C32+4+i}, 0x80000000, v{C32+i}"); a(f"v_xor_b32 v{S32+4+i}, 0x80000000, v{S32+i}")

def w_load(a):
    a("s_lshl_b32 s30, s2, 13"); a("s_lshl_b32 s31, s24, 11"); a("s_add_u32 s30, s30, s31")
    a(f"s_add_u32 s30, s30, {WT}")
    a(f"buffer_load_dwordx4 {v(VW,4)}, v6, {W}, s30 offen")
    a(f"buffer_load_dwordx4 {v(VW+4,4)}, v6, {W}, s30 offen offset:1024")

def spin_check(a, lretry):
    lx = a.uid("px")
    a(f"s_cbranch_vccz {lx}")
    a(f"s_sub_u32 s{S_SPIN}, s{S_SPIN}, 1")
    a(f"s_cbranch_scc0 {lretry}")
    a(f"s_mov_b32 s{S_SPIN}, 0")
    a.label(lx)

def phase_c(a, first_hook):
    DF, U = 32, 64
    lp = a.uid("cpoll")
    a("v_lshrrev_b32 v4, 2, v0")
    a("v_and_b32 v7, 3, v0")
    a("v_lshlrev_b32 v7, 4, v7")
    a("v_lshl_or_b32 v7, v4, 15, v7")
    a("v_lshlrev_b32 v12, 5, v0")
    a("s_lshl_b32 s33, s2, 7")
    a(f"s_add_u32 s35, s33, s{S_TIN}")
    a(f"v_mov_b32 v10, {f32hex(1/512)}"); a(f"v_mov_b32 v11, {f32hex(1/512)}")
    a(f"v_mov_b32 v8, {f32hex(1e-5)}"); a(f"v_mov_b32 v9, {f32hex(1e-5)}")
    a.label(lp)
    a(f"buffer_load_dwordx4 {v(U,4)}, v7, {W}, s35 offen sc1")
    a(f"buffer_load_dwordx4 {v(U+4,4)}, v7, {W}, s35 offen offset:64 sc1")
    for p in range(4):
        a(f"s_add_u32 s34, s{S_ST}, {p*8192}")
        a(f"buffer_load_dwordx4 {v(DF+8*p,4)}, v12, {W}, s34 offen sc1")
        a(f"buffer_load_dwordx4 {v(DF+8*p+4,4)}, v12, {W}, s34 offen offset:16 sc1")
    first_hook()
    a("s_waitcnt vmcnt(0)")
    for i in range(4):
        a(f"v_pk_add_f32 {v(DF+2*i,2)}, {v(DF+2*i,2)}, {v(DF+8+2*i,2)}")
        a(f"v_pk_add_f32 {v(DF+16+2*i,2)}, {v(DF+16+2*i,2)}, {v(DF+24+2*i,2)}")
    a(f"v_max3_u32 v4, v{U}, v{U+1}, v{U+2}")
    a(f"v_max3_u32 v5, v{U+3}, v{U+4}, v{U+5}")
    for i in range(4): a(f"v_pk_add_f32 {v(DF+2*i,2)}, {v(DF+2*i,2)}, {v(DF+16+2*i,2)}")
    a(f"v_max3_u32 v4, v{U+6}, v{U+7}, v4")
    a(f"v_pk_add_f32 {v(DF+8,2)}, {v(DF,2)}, {v(DF+2,2)}")
    a(f"v_pk_add_f32 {v(DF+10,2)}, {v(DF+4,2)}, {v(DF+6,2)}")
    a("v_max_u32 v4, v4, v5")
    a(f"v_pk_add_f32 {v(DF+8,2)}, {v(DF+8,2)}, {v(DF+10,2)}")
    a("v_cmp_eq_u32 s[34:35], -1, v4") if False else a("v_cmp_eq_u32 s[4:5], -1, v4")
    a(f"v_cmp_u_f32 vcc, v{DF+8}, v{DF+9}")
    for i in range(4): a(f"v_pk_fma_f32 {v(DF+2*i,2)}, {v(DF+2*i,2)}, v[10:11], v[8:9]")
    a("s_or_b64 vcc, vcc, s[4:5]")
    spin_check(a, lp)
    stamp(a, 2)
    for i in range(8): a(f"v_rsq_f32 v{DF+i}, v{DF+i}")
    a("v_lshlrev_b32 v7, 4, v0")
    a(f"v_add_u32 v7, {L_SC}, v7")
    a(f"ds_write_b128 v7, {v(U,4)} offset:{CS}")
    a(f"ds_write_b128 v7, {v(U+4,4)} offset:{CS+4096}")
    lj = a.uid("jnz")
    a("s_cmp_lg_u32 s2, 0"); a(f"s_cbranch_scc1 {lj}")
    for i in range(4): a(f"v_mov_b32 v{U+i}, v{U+4+i}")
    for i in range(4): a(f"v_mov_b32 v{U+4+i}, 0")
    a.label(lj)
    for p in range(2):
        for i in range(4):
            src = U + 4 * p + i
            t = DF + 8 + 2 * i
            a(f"v_lshlrev_b32 v{t}, 16, v{src}")
            a(f"v_and_b32 v{t+1}, 0xffff0000, v{src}")
            a(f"v_pk_mul_f32 {v(t,2)}, {v(t,2)}, {v(DF+2*i,2)}")
            a(f"v_cvt_pk_bf16_f32 v{DF+16+4*p+i}, v{t}, v{t+1}")
        a(f"ds_write_b128 v7, {v(DF+16+4*p,4)} offset:{4096*p}")
    a("s_waitcnt lgkmcnt(0)")
    a("s_barrier")

def phase_c_compute(a):
    DF, AC, PK, T = 32, 64, 80, 192
    a("v_bfe_u32 v4, v1, 2, 2")
    a("v_lshl_add_u32 v4, v14, 3, v4")
    a("v_lshlrev_b32 v4, 6, v4")
    a("v_and_b32 v5, 3, v1")
    a("v_lshl_or_b32 v4, v5, 3, v4")
    a(f"v_add_u32 v4, {L_SC}, v4")
    fr = lambda part, mt, ks: DF + 4 * (part * 4 + mt * 2 + ks)
    for mt in range(2):
        for ks in range(2):
            for part in range(2):
                o = part * 4096 + ks * 2048 + mt * 32
                a(f"ds_read_b64_tr_b16 {v(fr(part,mt,ks),2)}, v4 offset:{o}")
                a(f"ds_read_b64_tr_b16 {v(fr(part,mt,ks)+2,2)}, v4 offset:{o+256}")
    for i in range(8):
        a(f"v_xor_b32 v{N64+i}, 0x80008000, v{S64+i}")
    acc = lambda part, mt: AC + 4 * (part * 2 + mt)
    def big(Cc, Sre, Sim, per, fill=()):
        n = 0; fill = list(fill)
        for mt in range(2):
            for ks in range(2):
                n += 1
                a(f"s_waitcnt lgkmcnt({(4-n)*2*per})")
                c0 = lambda p: "0" if ks == 0 else v(acc(p, mt), 4)
                seq = [f"{M16} {v(acc(0,mt),4)}, {v(fr(0,mt,ks),4)}, {v(Cc+4*ks,4)}, {c0(0)}",
                       f"{M16} {v(acc(1,mt),4)}, {v(fr(1,mt,ks),4)}, {v(Cc+4*ks,4)}, {c0(1)}",
                       f"{M16} {v(acc(0,mt),4)}, {v(fr(1,mt,ks),4)}, {v(Sre+4*ks,4)}, {v(acc(0,mt),4)}",
                       f"{M16} {v(acc(1,mt),4)}, {v(fr(0,mt,ks),4)}, {v(Sim+4*ks,4)}, {v(acc(1,mt),4)}"]
                for m in seq:
                    a(m)
                    for _ in range(2):
                        if fill: a(fill.pop(0))
        for f in fill: a(f)
    fill = [f"v_xor_b32 v{N32+i}, 0x80008000, v{S32+i}" for i in range(8)]
    fill += ["v_mul_u32_u24 v4, 144, v13", "v_lshl_add_u32 v4, v14, 3, v4", "s_lshl_b32 s31, s24, 5",
             f"s_add_u32 s31, s31, {L_E0}", "v_add_u32 v4, s31, v4",
             "v_lshrrev_b32 v5, 2, v13", "v_lshlrev_b32 v5, 3, v5", "v_and_or_b32 v5, v13, 3, v5",
             "v_mul_u32_u24 v5, 144, v5", "v_lshl_add_u32 v5, v14, 4, v5", f"v_add_u32 v5, {L_E0}, v5",
             "v_lshlrev_b32 v7, 6, v13", "v_lshl_or_b32 v7, v14, 4, v7", "s_lshl_b32 s31, s24, 10",
             "v_add_u32 v7, s31, v7", f"v_add_u32 v12, {L_RAW}, v7",
             "v_lshlrev_b32 v7, 15, v13", "v_lshl_or_b32 v7, v14, 4, v7"]
    big(C64, S64, N64, 2, fill)
    stamp(a, 3)
    def cmul(cr, ci, sign):
        order = [(0, 0), (0, 2), (1, 0), (1, 2)]
        for mt, r in order:
            i = 4 * mt + r
            ar, ai = v(acc(0, mt) + r, 2), v(acc(1, mt) + r, 2)
            a(f"v_pk_mul_f32 {v(T+i,2)}, {ar}, {v(cr+i,2)}")
            a(f"v_pk_mul_f32 {v(T+8+i,2)}, {ai}, {v(cr+i,2)}")
            n1 = " neg_lo:[1,0,0] neg_hi:[1,0,0]"
            a(f"v_pk_fma_f32 {v(T+i,2)}, {ai}, {v(ci+i,2)}, {v(T+i,2)}{n1 if sign>0 else ''}")
            a(f"v_pk_fma_f32 {v(T+8+i,2)}, {ar}, {v(ci+i,2)}, {v(T+8+i,2)}{'' if sign>0 else n1}")
        for i in range(8): a(f"v_cvt_pk_bf16_f32 v{PK+i}, v{T+2*i}, v{T+2*i+1}")
    cmul(TC, TS, -1)
    Br, Bi = v(PK, 4), v(PK + 4, 4)
    WR, WI = DF, DF + 8
    unp = []
    for i in range(8):
        unp.append(f"v_lshlrev_b32 v{WR+i}, 16, v{VW+i}")
        unp.append(f"v_and_b32 v{WI+i}, 0xffff0000, v{VW+i}")
    seq = []
    for mt in range(2):
        seq.append(f"{M16} {v(acc(0,mt),4)}, {v(C32+4*mt,4)}, {Br}, 0")
        seq.append(f"{M16} {v(acc(1,mt),4)}, {v(C32+4*mt,4)}, {Bi}, 0")
    for mt in range(2):
        seq.append(f"{M16} {v(acc(0,mt),4)}, {v(S32+4*mt,4)}, {Bi}, {v(acc(0,mt),4)}")
        seq.append(f"{M16} {v(acc(1,mt),4)}, {v(N32+4*mt,4)}, {Br}, {v(acc(1,mt),4)}")
    for m in seq:
        a(m); a(unp.pop(0)); a(unp.pop(0))
    cmul(WR, WI, +1)
    for nt in range(2):
        a(f"{M16} {v(acc(0,nt),4)}, {Br}, {v(C32+4*nt,4)}, 0")
        a(f"{M16} {v(acc(1,nt),4)}, {Bi}, {v(C32+4*nt,4)}, 0")
    a(f"ds_read_b128 v[8:11], v12")
    a(f"ds_read_b128 {v(VW,4)}, v12 offset:4096")
    for nt in range(2):
        a(f"{M16} {v(acc(0,nt),4)}, {Bi}, {v(N32+4*nt,4)}, {v(acc(0,nt),4)}")
        a(f"{M16} {v(acc(1,nt),4)}, {Br}, {v(S32+4*nt,4)}, {v(acc(1,nt),4)}")
    cmul(IC, IS, +1)
    for part in range(2):
        for nt in range(2):
            a(f"ds_write_b64 v4, {v(PK+4*part+2*nt,2)} offset:{part*CS + nt*16*144}")
    a("s_waitcnt lgkmcnt(0)")
    stamp(a, 4)
    a("s_barrier")
    for mt in range(2):
        for ks in range(2):
            for part in range(2):
                a(f"ds_read_b128 {v(fr(part,mt,ks),4)}, v5 offset:{part*CS + mt*4*144 + ks*64}")
    fill = []
    for part in range(2):
        raw = 8 if part == 0 else VW
        for i in range(4):
            fill.append(f"v_lshlrev_b32 v{T+8*part+2*i}, 16, v{raw+i}")
            fill.append(f"v_and_b32 v{T+8*part+2*i+1}, 0xffff0000, v{raw+i}")
    big(C64, N64, S64, 1, fill)
    a("s_barrier")
    lj = a.uid("jnz")
    a("s_cmp_lg_u32 s2, 0"); a(f"s_cbranch_scc1 {lj}")
    for i in range(8): a(f"v_mov_b32 v{AC+8+i}, v{AC+i}")
    for i in range(8): a(f"v_mov_b32 v{AC+i}, 0")
    a.label(lj)
    a("s_lshl_b32 s31, s2, 7")
    a("s_lshl_b32 s32, s24, 19")
    a("s_add_u32 s31, s31, s32")
    a(f"s_add_u32 s31, s31, s{S_TOUT}")
    for part in range(2):
        for i in range(4):
            a(f"v_pk_add_f32 {v(T+8*part+2*i,2)}, {v(T+8*part+2*i,2)}, {v(AC+8*part+2*i,2)}")
            a(f"v_cvt_pk_bf16_f32 v{PK+4*part+i}, v{T+8*part+2*i}, v{T+8*part+2*i+1}")
        a(f"buffer_store_dwordx4 {v(PK+4*part,4)}, v7, {W}, s31 offen offset:{64*part} sc1")

def masks_(a):
    a("v_lshlrev_b32 v4, 2, v3")
    a("v_sub_u32 v4, v2, v4")
    a("v_cvt_f32_i32 v4, v4")
    a(f"v_mul_f32 v4, {f32hex(BIG)}, v4")
    for q in range(4):
        for r in range(4):
            c = 8 * q + r; i = 4 * q + r
            a(f"v_subrev_f32 v{CD+i}, {f32hex(c*BIG)}, v4")
            a(f"v_min_f32 v{CD+i}, 0, v{CD+i}")

def tr_addr_q(a):
    a("v_bfe_u32 v8, v1, 2, 2")
    a("v_lshl_add_u32 v8, v3, 2, v8")
    a("v_lshlrev_b32 v8, 6, v8")
    a("v_bfe_u32 v4, v1, 4, 1")
    a("v_lshl_or_b32 v8, v4, 5, v8")
    a("v_and_b32 v4, 3, v1")
    a("v_lshl_or_b32 v8, v4, 3, v8")
    a("v_add_u32 v8, s31, v8")
    a("v_lshlrev_b32 v9, 16, v3")
    a("v_sub_u32 v9, v9, v3")
    a("v_or_b32 v9, 0xffff0000, v9")

L_RS = L_STG - 0
def phase_q_m(a, cold):
    VA, AK, AV, AQ = 128, 32, 48, 16
    BFS = [64, 72, 80]
    a("s_lshl_b32 s31, s24, 14")
    a(f"s_add_u32 s31, s31, {L_STG}")
    tr_addr_q(a)
    a(f"v_add_u32 v5, {L_BQ}, v6")
    def rdA(ks):
        a(f"ds_read_b64_tr_b16 {v(VA+4*ks,2)}, v8 offset:{(ks&15)*1024}")
        a(f"ds_read_b64_tr_b16 {v(VA+4*ks+2,2)}, v8 offset:{(ks&15)*1024+512}")
    def rdB(ks):
        b = BFS[ks % 3]
        a(f"ds_read_b128 {v(b,4)}, v6 offset:{L_BK+ks*1024}")
        a(f"ds_read_b128 {v(b+4,4)}, v6 offset:{L_BV+ks*1024}")
    a(f"s_lshl_b32 s32, s{S_G}, 6"); a(f"s_add_u32 s32, s32, s{S_Q}"); a("s_lshl_b32 s32, s32, 12"); a(f"s_add_u32 s32, s32, s{S_KV}")
    a("v_add_u32 v7, s40, v6")
    a("v_lshl_add_u32 v15, v2, 2, s31")
    a("v_lshl_add_u32 v11, v3, 4, s31")
    a(f"s_lshl_b32 s33, s{S_RB}, 4"); a(f"s_add_u32 s33, s33, s{S_G}"); a("s_lshl_b32 s33, s33, 9"); a("s_lshl_b32 s34, s24, 6")
    a("s_add_u32 s33, s33, s34"); a(f"s_lshl_b32 s34, s{S_L}, 17"); a("s_add_u32 s33, s33, s34")
    a(f"s_add_u32 s44, s33, {FL1 + 16*512 + 256}")
    a(f"v_add_u32 v4, s{S_RB}, v1"); a("v_cmp_gt_u32 vcc, 15, v4"); a("s_and_b64 s[46:47], vcc, 3")
    a("s_waitcnt vmcnt(0)")
    stamp(a, 5)
    a("s_barrier")
    rdB(0); rdB(1)
    a("s_barrier")
    a("s_barrier")
    stamp(a, 6); stamp(a, 6, "clk"); cstamp(a, 8)
    q = []
    for ks in range(4): rdA(ks); q += [("A", ks)] * 2
    for k in range(32):
        g, j = k >> 2, k & 3
        need = [i for i, x in enumerate(q) if x == ("B", k) or x == ("A", k)]
        if need:
            q = q[need[-1] + 1:]
            a(f"s_waitcnt lgkmcnt({min(len(q),15)})")
        if k == 0:
            a(f"v_mov_b32 v12, v{VA}")
            a(f"v_and_b32 v{VA}, v9, v{VA}")
        rds = []
        if k + 2 < 32:
            b2 = BFS[(k + 2) % 3]
            rds += [(("B", k + 2), f"ds_read_b128 {v(b2,4)}, v6 offset:{L_BK+(k+2)*1024}"),
                    (("B", k + 2), f"ds_read_b128 {v(b2+4,4)}, v6 offset:{L_BV+(k+2)*1024}")]
        ards = []
        if g + 1 < 8:
            for kk in {1: [0], 2: [1, 2], 3: [3]}.get(j, []):
                ks = 4 * g + 4 + kk
                ards += [(("A", ks), f"ds_read_b64_tr_b16 {v(VA+4*ks,2)}, v8 offset:{(ks&15)*1024}"),
                         (("A", ks), f"ds_read_b64_tr_b16 {v(VA+4*ks+2,2)}, v8 offset:{(ks&15)*1024+512}")]
        b = BFS[k % 3]
        A = v(VA + 4 * k, 4)
        def emit(lst):
            for tag, ins in lst: a(ins); q.append(tag)
        a(f"{MF} {v(AK,16)}, {v(b,4)}, {A}, {'0' if k==0 else v(AK,16)}")
        emit(rds + ards[2:4][:1])
        a(f"{MF} {v(AV,16)}, {A}, {v(b+4,4)}, {'0' if k==0 else v(AV,16)}")
        if j == 1 and g + 1 < 8:
            idx = [i for i, x in enumerate(q) if x[0] == "A"]
            if idx:
                q = q[idx[-1] + 1:]
                a(f"s_waitcnt lgkmcnt({len(q)})")
            a("s_barrier")
        emit(ards[:2] + ards[3:4])
    stamp(a, 7); stamp(a, 7, "clk"); cstamp(a, 9)
    NB = 4; BF = 112
    rdq = lambda ks: a(f"ds_read_b128 {v(BF+4*(ks%NB),4)}, v5 offset:{ks*1024}")
    RS = 64
    a("s_barrier")
    E = ["DS ds_read_b32 v10, v15 offset:5120"]
    E += [f"DS ds_read_b128 {v(RS+4*q_,4)}, v11 offset:{5120+32*q_}" for q_ in range(4)]
    E += ["SKIP", "SKIP", f"v_mul_u32_u24 v89, {16*512-256}, v1", "v_mov_b32 v88, 1", "SKIP", "SKIP", "WAITX"]
    for hh in range(2):
        for i in range(8): E.append(f"v_mul_f32 v{AK+8*hh+i}, v{AK+8*hh+i}, v10")
        for i in range(4): E.append(f"v_cvt_pk_bf16_f32 v{AK+4*hh+i}, v{AK+8*hh+2*i}, v{AK+8*hh+2*i+1}")
        E.append(f"buffer_store_dwordx4 {v(AK+4*hh,4)}, v6, {W}, s32 offen offset:{hh*1024} sc1")
    for hh in range(2):
        for i in range(8): E.append(f"v_mul_f32 v{AV+8*hh+i}, v{AV+8*hh+i}, v{RS+8*hh+i}")
        for i in range(4): E.append(f"v_cvt_pk_bf16_f32 v{AV+4*hh+i}, v{AV+8*hh+2*i}, v{AV+8*hh+2*i+1}")
        E.append(f"buffer_store_dwordx4 {v(AV+4*hh,4)}, v6, {W}, s32 offen offset:{2048+hh*1024} sc1")
    for x in (f"DS ds_write_b128 v7, {v(AK,4)}", f"DS ds_write_b128 v7, {v(AK+4,4)} offset:1024",
              f"DS ds_write_b128 v7, {v(AV,4)} offset:2048", f"DS ds_write_b128 v7, {v(AV+4,4)} offset:3072"):
        E += [x, "SKIP", "SKIP", "SKIP", "SKIP"]
    E += [f"v_mul_f32 v10, {f32hex(0.25*math.log2(math.e))}, v10", "v_mov_b32 v11, v10"]
    pre = Asm(); pre._uid = a._uid; attn_pre(pre); E += pre.lines
    q = []
    def rd(ks): rdq(ks); q.append(("B", ks))
    for ks in range(NB - 1): rd(ks)
    for ks in range(32):
        if ("B", ks) in q:
            idx = q.index(("B", ks))
            a(f"s_waitcnt lgkmcnt({min(len(q)-1-idx,15)})")
            del q[:idx + 1]
        a(f"{MF} {v(AQ,16)}, {v(BF+4*(ks%NB),4)}, {v(VA+4*ks,4)}, {'0' if ks==0 else v(AQ,16)}")
        if ks + NB - 1 < 32: rd(ks + NB - 1)
        for _ in range(5):
            if not E: break
            e = E.pop(0)
            if e == "SKIP": pass
            elif e == "WAITX":
                xs = [i for i, x in enumerate(q) if x[0] == "X"]
                if xs:
                    a(f"s_waitcnt lgkmcnt({len(q)-1-xs[-1]})"); del q[:xs[-1] + 1]
            elif e.startswith("DS "):
                a(e[3:]); q.append(("X", 0))
            else: a(e)
    assert not E
    a(f"v_mov_b32 v{VA}, v12")
    a("s_waitcnt vmcnt(0)")
    a("s_mov_b64 exec, s[46:47]")
    a(f"buffer_store_dword v88, v89, {W}, s44 offen sc1")
    a("s_mov_b64 exec, -1")
    for i in range(4, 8): a(f"v_pk_mul_f32 {v(AQ+2*i,2)}, {v(AQ+2*i,2)}, v[10:11]")
    for i in range(4, 8): a(f"v_cvt_pk_bf16_f32 v{AK+4+i}, v{AQ+2*i}, v{AQ+2*i+1}")
    a(f"ds_write_b128 v7, {v(AK+8,4)} offset:4096")
    for i in range(4): a(f"v_pk_mul_f32 {v(AQ+2*i,2)}, {v(AQ+2*i,2)}, v[10:11]")
    for i in range(4): a(f"v_cvt_pk_bf16_f32 v{AQ+i}, v{AQ+2*i}, v{AQ+2*i+1}")
    attn_addr(a)
    a("s_waitcnt lgkmcnt(0)")
    stamp(a, 8)
    a("s_barrier")

def stream_loader(a, cold):
    CK = 32
    a("s_lshl_b32 s31, s25, 14")
    a(f"s_add_u32 s31, s31, {L_STG}")
    a(f"s_lshl_b32 s59, s{S_Q}, 15")
    a(f"s_add_u32 s59, s59, s{S_TOUT}")
    tr_addr_q(a)
    a("s_mov_b32 s38, 0xaaaaaaaa"); a("s_mov_b32 s39, 0xaaaaaaaa")
    a("s_mov_b32 s4, 0xcccccccc"); a("s_mov_b32 s5, 0xcccccccc")
    a(f"s_lshl_b32 s60, s{S_CG}, 3"); a("s_add_u32 s60, s60, s24"); a("s_lshl_b32 s60, s60, 14")
    a(f"s_lshl_b32 s33, s{S_L}, 19"); a("s_add_u32 s60, s60, s33"); a(f"s_add_u32 s60, s60, {WOP}")
    def pl2(g):
        for i in (2 * g, 2 * g + 1):
            a(f"buffer_load_dwordx4 {v(PB+4*i,4)}, v6, {W}, s60 offen offset:{(i&1)*1024}")
        a("s_add_u32 s60, s60, 2048")
    def dmag(g):
        a(f"s_add_u32 s30, s59, {g*4096}")
        a(f"s_add_u32 m0, s31, {(g&3)*4096}")
        for i in range(4): a(f"buffer_load_dwordx4 v6, {W}, s30 offen offset:{i*1024} sc1 lds")
    a("v_add_u32 v7, s31, v6")
    a("s_lshl_b32 s33, s25, 7"); a("s_add_u32 s33, s33, 124")
    a("v_lshl_add_u32 v5, v1, 9, s33")
    a("s_mov_b32 s33, 0")
    a("s_setprio 2")
    a("s_barrier")
    stamp(a, 3)
    lpr = a.uid("probe")
    a.label(lpr)
    a(f"buffer_load_dword v60, v5, {W}, s59 offen sc1")
    a("s_waitcnt vmcnt(0)")
    a("v_cmp_eq_u32 vcc, -1, v60")
    spin_check(a, lpr)
    a("s_barrier")
    stamp(a, 2)
    for g in range(4): dmag(g)
    vq = [0] * 4 + [1] * 4 + [2] * 4 + [3] * 4
    for g in range(8):
        lr, lb = a.uid(f"rty{g}"), a.uid(f"bk{g}")
        issued = min(g + 2, 7) if g >= 2 else 3
        pre = min(g + 1, 7) if g >= 3 else 3
        last = max(i for i, x in enumerate(vq) if x == g)
        vq = vq[last + 1:]
        a(f"s_waitcnt vmcnt({len(vq)})")
        if g > 0:
            lnd = a.uid("nd")
            a("s_cmp_eq_u32 s33, 0"); a(f"s_cbranch_scc1 {lnd}")
            a("s_waitcnt vmcnt(0)"); a("s_mov_b32 s33, 0")
            a.label(lnd)
        if g in (4, 5): stamp(a, 6 + 3 * (g - 4), "st")
        for i in range(4):
            a(f"ds_read_b64_tr_b16 {v(CK+4*i,2)}, v8 offset:{(g&3)*4096+i*1024}")
            a(f"ds_read_b64_tr_b16 {v(CK+4*i+2,2)}, v8 offset:{(g&3)*4096+i*1024+512}")
        if g >= 2 and g + 2 < 8: dmag(g + 2); vq += [g + 2] * 4
        if g == 1:
            a("s_mov_b32 s45, s33")
            touch(a, W, WOP, 1, 61); vq += ["t"]
            a("s_mov_b32 s33, s45")
        if g == 7:
            lq = a.uid("nbq")
            a(f"s_cmp_lg_u32 s{S_L}, 0"); a(f"s_cbranch_scc1 {lq}")
            a("s_lshl_b32 s33, s25, 13")
            a(f"s_lshl_b32 s34, s{S_G}, 15"); a("s_add_u32 s34, s34, s33")
            btile_dma(a, W, 34, WP, L_BQ)
            a("s_mov_b32 s33, 0")
            a.label(lq)
        if g in (4, 5): stamp(a, 7 + 3 * (g - 4), "st")
        a.label(lb)
        for i in range(4):
            a(f"s_waitcnt lgkmcnt({6-2*i})")
            if g == 0 and i == 0:
                a(f"v_or_b32 v4, 0xffff0000, v{CK}")
                a(f"v_and_b32 v{CK}, v9, v{CK}")
                a("v_cmp_eq_u32 s[34:35], -1, v4")
            if "nogram" in os.environ.get("KX", ""):
                if i == 0:
                    for e in range(8): a(f"v_mov_b32 v{48+e}, 1.0")
                continue
            for e in range(2):
                c = "0" if i == 0 else v(48+4*e, 4)
                a(f"v_mfma_f32_4x4x4_16b_bf16 {v(48+4*e,4)}, {v(CK+4*i+2*e,2)}, {v(CK+4*i+2*e,2)}, {c}")
        a("v_cmp_u_f32 vcc, v48, v52")
        if g == 0: a("s_or_b64 vcc, vcc, s[34:35]")
        a(f"s_cbranch_vccnz {lr}")
        a.label(lb + "_ok")
        if g in (4, 5): stamp(a, 8 + 3 * (g - 4), "st")
        a("s_barrier")
        if g == 0: stamp(a, 4)
        if g == 5: stamp(a, 12, "st")
        for e in range(4):
            if g == 0: a(f"v_add_f32 v{56+e}, v{48+e}, v{52+e}")
            else:
                a(f"v_add_f32 v{48+e}, v{48+e}, v{52+e}")
                a(f"v_add_f32 v{56+e}, v{56+e}, v{48+e}")
        def cold_code(g=g, lr=lr, lb=lb, issued=issued):
            a.label(lr)
            a(f"s_sub_u32 s{S_SPIN}, s{S_SPIN}, 1")
            lgo = a.uid("go")
            a(f"s_cbranch_scc0 {lgo}")
            a(f"s_mov_b32 s{S_SPIN}, 0")
            a(f"s_branch {lb}_ok")
            a.label(lgo)
            if DEBUG: a("s_add_u32 s96, s96, 1")
            lre = a.uid("re")
            a("s_waitcnt vmcnt(0)")
            a.label(lre)
            dmag(g)
            a("s_waitcnt vmcnt(0)")
            for i in range(4): a(f"ds_read_b128 {v(CK+4*i,4)}, v7 offset:{(g&3)*4096+i*1024}")
            a("s_waitcnt lgkmcnt(0)")
            a(f"v_max_u32 v4, v{CK}, v{CK+1}")
            for i in range(1, 8): a(f"v_max3_u32 v4, v{CK+2*i}, v{CK+2*i+1}, v4")
            a("v_cmp_eq_u32 vcc, -1, v4")
            spin_check(a, lre)
            for gg in range(g + 1, issued + 1): dmag(gg)
            if issued > g: a(f"s_mov_b32 s33, 1")
            for i in range(4):
                a(f"ds_read_b64_tr_b16 {v(CK+4*i,2)}, v8 offset:{(g&3)*4096+i*1024}")
                a(f"ds_read_b64_tr_b16 {v(CK+4*i+2,2)}, v8 offset:{(g&3)*4096+i*1024+512}")
            a(f"s_branch {lb}")
        cold.append(cold_code)
    lbx = a.uid("nbx")
    a(f"s_cmp_eq_u32 s{S_L}, 0"); a(f"s_cbranch_scc1 {lbx}")
    a("s_lshl_b32 s33, s25, 13")
    a(f"s_lshl_b32 s34, s{S_G}, 15"); a("s_add_u32 s34, s34, s33")
    a("s_cmp_eq_u32 s25, 3"); a(f"s_cbranch_scc1 {lbx}")
    btile_dma(a, GT_, 34, 0, L_BK)
    a.label(lbx)
    a("v_cndmask_b32 v56, v56, v57, s[38:39]")
    a("v_cndmask_b32 v58, v58, v59, s[38:39]")
    a("v_cndmask_b32 v15, v56, v58, s[4:5]")
    a("v_mov_b32 v11, v15")
    a("v_permlane32_swap_b32 v15, v11")
    a("v_add_f32 v15, v15, v11")
    a(f"v_mov_b32 v11, {f32hex(1e-5)}")
    a(f"v_fmac_f32 v11, {f32hex(1/512)}, v15")
    a("v_rsq_f32 v10, v11")
    a("v_lshl_add_u32 v4, v2, 2, s31")
    a("ds_write_b32 v4, v10 offset:5120")
    a("s_setprio 0")
    lq = a.uid("nbqw")
    a(f"s_cmp_lg_u32 s{S_L}, 0"); a(f"s_cbranch_scc1 {lq}")
    a("s_waitcnt vmcnt(0)")
    a.label(lq)
    a("s_waitcnt lgkmcnt(0)")
    stamp(a, 5)
    return pl2

def btile_dma(a, srd, gbase_sgpr, gofs, lbase):
    for b in range(2):
        a(f"s_add_u32 s32, s{gbase_sgpr}, {gofs + b*4096}")
        a(f"s_add_u32 m0, s33, {lbase + b*4096}")
        for i in range(4): a(f"buffer_load_dwordx4 v6, {srd}, s32 offen offset:{i*1024} lds")

def touch(a, srd, base, n, vd):
    a("v_and_b32 v4, 255, v0"); a("v_lshlrev_b32 v4, 6, v4")
    a("s_lshr_b32 s34, s2, 3"); a("s_lshl_b32 s34, s34, 14")
    a(f"s_add_u32 s33, s34, {base}")
    a(f"buffer_load_dword v{vd}, v4, {srd}, s33 offen")

def fill(a, vaddr, sbase, regions, nst, vd=8):
    for reg in regions:
        for i in range(nst):
            a(f"s_add_u32 s32, s{sbase}, {reg + i*4096}")
            a(f"buffer_store_dwordx4 {v(vd,4)}, v{vaddr}, {W}, s32 offen sc1")

def phase_q_h(a, cold):
    pl2 = stream_loader(a, cold)
    a("s_barrier")
    l1, l2 = a.uid("hl1"), a.uid("hl2")
    a(f"s_cmp_eq_u32 s{S_L}, 0"); a(f"s_cbranch_scc1 {l1}")
    a("s_cmp_lg_u32 s25, 3"); a(f"s_cbranch_scc1 {l2}")
    btile_dma(a, GT_, 34, 0, L_BK)
    a.label(l2)
    a("s_waitcnt vmcnt(0)")
    a(f"s_branch {l1}_j")
    a.label(l1)
    for g in range(8): pl2(g)
    a.label(l1 + "_j")
    attn_pre(a); attn_addr(a)
    a("v_add_u32 v7, s40, v6")
    stamp(a, 8)
    a("s_barrier")
    a("ds_read_b128 v[16:19], v7 offset:4096")

S_OWN, S_HAL, S_NH = 40, 44, 62
def attn_bases(a):
    a("s_sub_u32 s32, 3, s25"); a("s_cmp_ge_u32 s24, 4"); a(f"s_cselect_b32 s{S_QB}, s32, s25")
    a(f"s_lshl_b32 s{S_AQ}, s{S_RB}, 2"); a(f"s_add_u32 s{S_AQ}, s{S_AQ}, s{S_QB}")
    a(f"s_lshl_b32 s40, s{S_QB}, 13"); a(f"s_add_u32 s40, s40, {L_STG}")
    a(f"s_lshl_b32 s32, s{S_RB}, 2"); a("s_sub_i32 s32, 8, s32"); a(f"s_max_i32 s32, s32, s{S_QB}")
    a("s_sub_u32 s41, 8, s32")
    a("s_lshl_b32 s42, s32, 12"); a(f"s_add_u32 s42, s42, {L_HALO}")
    a("s_lshr_b32 s33, s24, 1"); a("s_lshl_b32 s33, s33, 13"); a("s_and_b32 s34, s24, 1"); a("s_lshl_b32 s34, s34, 10")
    a("s_add_u32 s61, s33, s34"); a(f"s_add_u32 s61, s61, {L_STG+6144}")
    a("s_movk_i32 s49, 0x207")

def attn_pre(a):
    VB = 72
    a("s_lshl_b32 s45, s26, 10")
    a("v_add_u32 v8, s45, v6")
    a("v_and_b32 v9, 47, v1")
    a("v_lshlrev_b32 v9, 4, v9")
    a("s_lshl_b32 s45, s26, 8"); a("s_add_u32 s45, s45, 2048")
    a("v_add_u32 v9, s45, v9")
    for i in range(16): a(f"v_mov_b32 v{VB+i}, 0x3f803f80")
    a("s_mov_b32 s38, 0xffff"); a("s_mov_b32 s39, 0xffff")
    a(f"s_lshl_b32 s60, s{S_CG}, 3"); a("s_add_u32 s60, s60, s24")
    a("s_lshl_b32 s45, s60, 10")
    a("s_lshl_b32 s60, s60, 14")
    a(f"s_lshl_b32 s48, s{S_L}, 19"); a("s_add_u32 s60, s60, s48")
    a(f"s_add_u32 s60, s60, {WOP}")
    a(f"s_lshl_b32 s48, s{S_PS}, 15"); a("s_add_u32 s45, s45, s48"); a(f"s_add_u32 s43, s45, s{S_TOUT}")

def attn_addr(a):
    a("v_add_u32 v20, s40, v8")
    a("v_add_u32 v21, s40, v9")
    a("v_add_u32 v22, s42, v8")
    a("v_add_u32 v23, s42, v9")

def phase_attn(a, cold):
    QF = v(16, 4)
    S0, S1, PP, VB, KB = 32, 48, 64, 72, 88
    S = lambda b: S0 if b % 2 == 0 else S1
    def rdK(b, va, off): a(f"ds_read_b128 {v(KB+4*(b&1),4)}, v{va} offset:{off}")
    def rdV(b, va, off):
        a("s_mov_b64 exec, s[38:39]")
        a(f"ds_read_b128 {v(VB+8*(b&1),4)}, v{va} offset:{off}")
        a(f"ds_read_b128 {v(VB+8*(b&1)+4,4)}, v{va} offset:{off+1024}")
        a("s_mov_b64 exec, -1")
    def run(n, vk, vv, off, C0, first, exit_test, hook, tail):
        ldone = a.uid("adone"); exits = []
        rdK(0, vk, off(0)); rdK(1, vk, off(1)); rdV(0, vv, off(0))
        a("s_waitcnt lgkmcnt(3)")
        a(f"{MF} {v(S0,16)}, {v(KB,4)}, {QF}, {C0}")
        for b in range(n):
            s_ = S(b); vb = VB + 8 * (b & 1)
            if b + 1 < n:
                a(f"s_waitcnt lgkmcnt({2 if b == 0 else 0})")
                a(f"{MF} {v(S(b+1),16)}, {v(KB+4*((b+1)&1),4)}, {QF}, 0")
                if b + 2 < n: rdK(b + 2, vk, off(b + 2))
            for i in range(2): a(f"v_exp_f32 v{s_+i}, v{s_+i}")
            if b > 0:
                pv = VB + 8 * ((b - 1) & 1)
                a(f"{MF} {v(OA,16)}, {v(pv+4,4)}, {v(PP+4,4)}, {v(OA,16)}")
            for i in range(2, 8): a(f"v_exp_f32 v{s_+i}, v{s_+i}")
            if b + 1 < n: rdV(b + 1, vv, off(b + 1))
            for i in range(4): a(f"v_cvt_pk_bf16_f32 v{PP+i}, v{s_+2*i}, v{s_+2*i+1}")
            for i in range(8, 10): a(f"v_exp_f32 v{s_+i}, v{s_+i}")
            if b == 0 or b + 1 == n: a(f"s_waitcnt lgkmcnt({(2 if b+1<n else 0) + (1 if b+2<n else 0)})")
            a(f"{MF} {v(OA,16)}, {v(vb,4)}, {v(PP,4)}, {'0' if (b==0 and first) else v(OA,16)}")
            for i in range(10, 16): a(f"v_exp_f32 v{s_+i}, v{s_+i}")
            hook(b)
            for i in range(4, 8): a(f"v_cvt_pk_bf16_f32 v{PP+i}, v{s_+2*i}, v{s_+2*i+1}")
            if b + 1 < n:
                le = a.uid(f"ex{b}"); exits.append((b, le))
                exit_test(b); a(f"s_cbranch_scc1 {le}")
        a(f"{MF} {v(OA,16)}, {v(VB+8*((n-1)&1)+4,4)}, {v(PP+4,4)}, {v(OA,16)}")
        a.label(ldone)
        chain = [a.uid(f"pl{i}") for i in range(n + 1)]
        def cold_exits():
            for b, le in exits:
                a.label(le)
                a(f"{MF} {v(OA,16)}, {v(VB+8*(b&1)+4,4)}, {v(PP+4,4)}, {v(OA,16)}")
                a(f"s_branch {chain[b+1]}")
            for i in range(0, n):
                a.label(chain[i])
                tail(i)
            a.label(chain[n])
            a(f"s_branch {ldone}")
        cold.append(cold_exits)
        return chain
    stamp(a, 9)
    def pload(i):
        if i == 8: a("s_add_u32 s60, s60, 8192")
        a(f"buffer_load_dwordx4 {v(PB+4*i,4)}, v{12 if (i&4) else 6}, {W}, s60 offen offset:{(i&3)*1024}")
    a("v_add_u32 v12, 4096, v6")
    lnof = a.uid("nofetch")
    a("s_cmp_lt_u32 s24, 4"); a(f"s_cbranch_scc1 {lnof}")
    a(f"s_cmp_ge_u32 s{S_QB}, 2"); a(f"s_cbranch_scc1 {lnof}")
    a("s_setprio 2")
    a(f"s_cmp_le_u32 s{S_RB}, s{S_QB}"); a(f"s_cbranch_scc1 {lnof}_p")
    a(f"s_sub_u32 s30, 1, s{S_QB}")
    a(f"s_lshl_b32 s35, s{S_RB}, 4"); a(f"s_add_u32 s35, s35, s{S_G}"); a("s_lshl_b32 s35, s35, 9")
    a("s_lshl_b32 s34, s30, 8"); a("s_add_u32 s35, s35, s34")
    a(f"s_lshl_b32 s34, s{S_L}, 17"); a("s_add_u32 s35, s35, s34"); a(f"s_add_u32 s35, s35, {FL1}")
    a("v_and_b32 v4, 3, v1"); a("v_lshlrev_b32 v4, 6, v4")
    a(f"s_add_u32 s32, s{S_RB}, s30"); a("s_sub_u32 s32, s32, 2"); a("s_lshl_b32 s32, s32, 2")
    a(f"s_lshl_b32 s33, s{S_G}, 6"); a("s_add_u32 s32, s32, s33"); a("s_lshl_b32 s32, s32, 12")
    a(f"s_add_u32 s32, s32, s{S_KV}")
    a("s_lshl_b32 s33, s30, 14"); a(f"s_add_u32 s33, s33, {L_HALO}")
    lp = a.uid("hpoll")
    stamp(a, 6)
    a.label(lp)
    if DEBUG: a("s_add_u32 s96, s96, 1")
    a(f"buffer_load_dword v5, v4, {W}, s35 offen sc1")
    a("s_waitcnt vmcnt(0)")
    a("v_cmp_eq_u32 vcc, 0, v5")
    spin_check(a, lp)
    stamp(a, 7)
    for bq in range(4):
        a(f"s_add_u32 m0, s33, {bq*4096}")
        for i in range(4): a(f"buffer_load_dwordx4 v6, {W}, s32 offen offset:{i*1024} sc1 lds")
        if bq < 3: a("s_add_u32 s32, s32, 4096")
    a.label(lnof + "_p")
    a("s_setprio 0")
    a.label(lnof)
    a(f"v_subrev_u32 v20, {3*OS}, v20"); a(f"v_subrev_u32 v21, {3*OS}, v21")
    run(4, 20, 21, lambda b: (3 - b) * OS, v(CD, 16), True,
        lambda b: a(f"s_cmp_eq_u32 s{S_QB}, {b}"), lambda b: None, lambda i: None)
    stamp(a, 10)
    lmid, lh = a.uid("mid"), a.uid("midh")
    a("s_mov_b32 m0, s61")
    a(f"buffer_load_dwordx4 v6, {W}, s43 offen sc1 lds")
    a("s_cmp_ge_u32 s24, 4"); a(f"s_cbranch_scc1 {lh}")
    a(f"s_cmp_eq_u32 s{S_L}, 0"); a(f"s_cbranch_scc1 {lmid}")
    VA = 128
    for ks in range(3): a(f"ds_read_b128 {v(S0+4*ks,4)}, v6 offset:{L_BK+ks*1024}")
    for ks in range(32):
        a(f"s_waitcnt lgkmcnt({min(2,31-ks)})")
        a(f"{MF} {v(S1,16)}, {v(S0+4*(ks&3),4)}, {v(VA+4*ks,4)}, {'0' if ks==0 else v(S1,16)}")
        if ks + 3 < 32: a(f"ds_read_b128 {v(S0+4*((ks+3)&3),4)}, v6 offset:{L_BK+(ks+3)*1024}")
    a(f"s_lshl_b32 s32, s{S_Q}, 15"); a(f"s_lshl_b32 s33, s{S_G}, 11"); a("s_add_u32 s32, s32, s33")
    a(f"s_add_u32 s32, s32, {X3B}")
    a("v_lshlrev_b32 v4, 5, v1")
    for i in range(8): a(f"v_cvt_pk_bf16_f32 v{S1+i}, v{S1+2*i}, v{S1+2*i+1}")
    a(f"buffer_store_dwordx4 {v(S1,4)}, v4, {W}, s32 offen sc1")
    a(f"buffer_store_dwordx4 {v(S1+4,4)}, v4, {W}, s32 offen offset:16 sc1")
    a(f"s_branch {lmid}")
    a.label(lh)
    a("s_waitcnt vmcnt(1)")
    a.label(lmid)
    a(f"v_mov_b32 v4, {f32hex(-BIG)}")
    a(f"s_cmp_ge_u32 s{S_AQ}, 8"); a("s_cselect_b32 s32, 0, 0x7f000000")
    a("v_mov_b32 v5, -2.0")
    a("v_add_f32 v4, s32, v4")
    for i in range(16):
        a(f"v_fma_f32 v{CO+i}, v{CD+i}, v5, v4")
        a(f"v_min_f32 v{CO+i}, 0, v{CO+i}")
    for i in range(4): a(f"v_mov_b32 v{24+i}, -1")
    a("v_lshlrev_b32 v15, 4, v0")
    a("s_lshl_b32 s59, s2, 13")
    a("s_waitcnt lgkmcnt(0)")
    stamp(a, 11)
    a("s_barrier")
    stamp(a, 6, "at"); cstamp(a, 10)
    FR = [T3, O2]
    def pl(b):
        if b < 2:
            lq = a.uid("nf")
            a(f"s_cmp_lg_u32 s{S_L}, 0"); a(f"s_cbranch_scc1 {lq}")
            a(f"s_add_u32 s33, s59, {FR[b]}")
            a(f"buffer_store_dwordx4 v[24:27], v15, {W}, s33 offen sc1")
            a.label(lq)
        if b < 6 and "nopl" not in os.environ.get("KX", ""):
            lq = a.uid("npl")
            a("s_cmp_ge_u32 s24, 4"); a(f"s_cbranch_scc1 {lq}")
            lo = [0, 3, 6, 9, 12, 14, 16]
            for i in range(lo[b], lo[b + 1]): pload(i)
            a.label(lq)
    lskip = a.uid("p2skip")
    a("s_cmp_eq_u32 s41, 0"); a(f"s_cbranch_scc1 {lskip}")
    chain = run(8, 22, 23, lambda b: b * 4096, v(CO, 16), False,
                lambda b: a(f"s_cmp_eq_u32 s41, {b+1}"), pl, pl)
    cold.append(lambda: (a.label(lskip), a(f"s_branch {chain[0]}")))
    cstamp(a, 11); stamp(a, 7, "at")
    a(f"s_lshl_b32 s32, s{S_AQ}, 5"); a(f"s_lshl_b32 s33, s{S_G}, 1"); a("s_add_u32 s32, s32, s33")
    a("s_add_u32 s32, s32, s26"); a("s_lshl_b32 s32, s32, 10"); a(f"s_add_u32 s32, s32, s{S_O}")
    lfb, lfin = a.uid("fallback"), a.uid("afin")
    def finish(check):
        a(f"v_rcp_f32 v10, v{OA+8}")
        if check:
            a(f"v_mov_b32 v4, {f32hex(2.0**-40)}")
            a(f"v_mov_b32 v5, {f32hex(2.0**40)}")
            a(f"v_med3_f32 v4, v{OA+8}, v4, v5")
            a(f"v_cmp_neq_f32 s[34:35], v4, v{OA+8}")
        a("v_mov_b32 v11, v10")
        for i in range(4): a(f"v_pk_mul_f32 {v(OA+2*i,2)}, {v(OA+2*i,2)}, v[10:11]")
        if check:
            a(f"v_add_f32 v4, |v{OA}|, |v{OA+1}|")
            a(f"v_add_f32 v5, |v{OA+2}|, |v{OA+3}|")
            for i in range(4, 8): a(f"v_add_f32 v{4+(i&1)}, |v{OA+i}|, v{4+(i&1)}")
            a(f"v_add_f32 v4, v4, v5")
            a(f"v_cmp_class_f32 vcc, v4, s49")
            a("s_or_b64 vcc, vcc, s[34:35]")
            if os.environ.get("FORCE_FB"): a("s_mov_b64 vcc, -1")
            a(f"s_cbranch_vccnz {lfb}")
    finish(True)
    a.label(lfin)
    for i in range(4): a(f"v_cvt_pk_bf16_f32 v{OA+i}, v{OA+2*i}, v{OA+2*i+1}")
    a("s_waitcnt vmcnt(16)")
    a(f"buffer_store_dwordx4 {v(OA,4)}, v6, {W}, s32 offen sc1")
    def cold_fb():
        a.label(lfb)
        a("s_waitcnt lgkmcnt(0)")
        a(f"v_mov_b32 v15, {f32hex(-3.0e38)}")
        for i in range(16): a(f"v_mov_b32 v{OA+i}, 0")
        for ps in range(2):
            for part in range(2):
                ll, le = a.uid("fl"), a.uid("fe")
                if part == 0:
                    a(f"s_add_u32 s30, s{S_QB}, 1"); a(f"v_add_u32 v4, {3*OS}, v20"); a(f"v_add_u32 v5, {3*OS}, v21")
                else:
                    a("s_mov_b32 s30, s41"); a("v_mov_b32 v4, v22"); a("v_mov_b32 v5, v23")
                    a("s_cmp_eq_u32 s30, 0"); a(f"s_cbranch_scc1 {le}")
                if part == 0:
                    for i in range(16): a(f"v_mov_b32 v{S1+i}, v{CD+i}")
                else:
                    a(f"v_mov_b32 v10, {f32hex(-BIG)}")
                    a(f"s_cmp_ge_u32 s{S_AQ}, 8"); a("s_cselect_b32 s33, 0, 0x7f000000")
                    a("v_mov_b32 v11, -2.0")
                    a("v_add_f32 v10, s33, v10")
                    for i in range(16):
                        a(f"v_fma_f32 v{S1+i}, v{CD+i}, v11, v10")
                        a(f"v_min_f32 v{S1+i}, 0, v{S1+i}")
                a.label(ll)
                a(f"ds_read_b128 {v(KB,4)}, v4")
                if ps == 1: rdV(0, 5, 0)
                a("s_waitcnt lgkmcnt(0)")
                a(f"{MF} {v(S0,16)}, {v(KB,4)}, {QF}, {v(S1,16)}")
                step = -OS if part == 0 else 4096
                a(f"v_add_u32 v4, {step & 0xffffffff}, v4"); a(f"v_add_u32 v5, {step & 0xffffffff}, v5")
                if ps == 0:
                    for i in range(8): a(f"v_max3_f32 v15, v{S0+2*i}, v{S0+2*i+1}, v15")
                else:
                    for i in range(16): a(f"v_sub_f32 v{S0+i}, v{S0+i}, v15")
                    for i in range(16): a(f"v_exp_f32 v{S0+i}, v{S0+i}")
                    for i in range(8): a(f"v_cvt_pk_bf16_f32 v{PP+i}, v{S0+2*i}, v{S0+2*i+1}")
                    a(f"{MF} {v(OA,16)}, {v(VB,4)}, {v(PP,4)}, {v(OA,16)}")
                    a(f"{MF} {v(OA,16)}, {v(VB+4,4)}, {v(PP+4,4)}, {v(OA,16)}")
                for i in range(16): a(f"v_mov_b32 v{S1+i}, 0")
                a("s_sub_u32 s30, s30, 1"); a("s_cmp_lg_u32 s30, 0"); a(f"s_cbranch_scc1 {ll}")
                a.label(le)
            if ps == 0:
                a("v_mov_b32 v11, v15")
                a("v_permlane32_swap_b32 v15, v11")
                a("v_max_f32 v15, v15, v11")
        finish(False)
        a(f"s_branch {lfin}")
    cold.append(cold_fb)

def phase_p(a, lend):
    OP, FB, ACC, T = 32, 48, 80, 48
    a("s_waitcnt lgkmcnt(0)")
    a("s_barrier")
    stamp(a, 4)
    l2, lc = a.uid("p2"), a.uid("pc")
    a(f"s_lshl_b32 s33, s{S_PS}, 15"); a("s_lshl_b32 s34, s24, 12"); a("s_add_u32 s33, s33, s34")
    a(f"s_add_u32 s33, s33, s{S_O}")
    a(f"s_add_u32 s34, s34, {L_HALO}")
    a("v_add_u32 v5, s34, v6")
    a("v_lshlrev_b32 v12, 9, v14"); a("v_lshl_or_b32 v12, v13, 4, v12")
    a(f"v_add_u32 v12, {L_HALO}, v12")
    rd = lambda ks, t, d: a(f"ds_read_b128 {v(d,4)}, v12 offset:{ks*2048 + t*256}")
    def poll(extra_issue, extra_chk):
        lp = a.uid("opoll")
        a.label(lp)
        if DEBUG: a("s_add_u32 s97, s97, 1")
        for i in range(4): a(f"buffer_load_dwordx4 {v(OP+4*i,4)}, v6, {W}, s33 offen offset:{i*1024} sc1")
        extra_issue()
        a("s_waitcnt vmcnt(0)")
        a(f"v_max_u32 v4, v{OP}, v{OP+1}")
        for i in range(1, 8): a(f"v_max3_u32 v4, v{OP+2*i}, v{OP+2*i+1}, v4")
        extra_chk()
        a("v_cmp_eq_u32 vcc, -1, v4")
        spin_check(a, lp)
        for i in range(4): a(f"ds_write_b128 v5, {v(OP+4*i,4)} offset:{i*1024}")
    a(f"s_cmp_lg_u32 s{S_L}, 0"); a(f"s_cbranch_scc1 {l2}")
    a("s_sub_u32 s39, s61, 6144")
    planar_pre(a, 7, 8, 9, 10, 11, 39, S_CG, 4, L_SUM)
    a("v_bfe_u32 v4, v1, 2, 2"); a("v_lshl_add_u32 v4, v14, 2, v4"); a("v_lshlrev_b32 v4, 6, v4")
    a("v_and_b32 v15, 3, v1"); a("v_lshl_or_b32 v4, v15, 3, v4"); a("v_add_u32 v4, s61, v4")
    a("s_waitcnt vmcnt(3)")
    a(f"ds_read_b64_tr_b16 {v(T,2)}, v4")
    a(f"ds_read_b64_tr_b16 {v(T+2,2)}, v4 offset:32")
    a(f"s_lshl_b32 s35, s{S_CG}, 3"); a("s_add_u32 s35, s35, s24"); a("s_lshl_b32 s35, s35, 10")
    a(f"s_lshl_b32 s32, s{S_PS}, 15"); a("s_add_u32 s35, s35, s32"); a(f"s_add_u32 s35, s35, {T2}")
    a("s_waitcnt lgkmcnt(0)")
    for i in range(4):
        a(f"v_lshlrev_b32 v{ACC+2*i}, 16, v{T+i}")
        a(f"v_and_b32 v{ACC+2*i+1}, 0xffff0000, v{T+i}")
    a("s_mov_b32 s62, 1")
    def tw_once():
        lq = a.uid("ntw")
        a("s_cmp_ge_u32 s24, 4"); a(f"s_cbranch_scc1 {lq}")
        a("s_cmp_eq_u32 s62, 2"); a(f"s_cbranch_scc1 {lq}")
        a("s_mov_b32 s62, 2")
        a("s_call_b64 s[6:7], GEN_TW")
        a.label(lq)
    poll(tw_once, lambda: None)
    a("s_waitcnt lgkmcnt(0)")
    stamp(a, 12)
    lnc = a.uid("nocc")
    a("s_cmp_ge_u32 s24, 4"); a(f"s_cbranch_scc1 {lnc}")
    w_load(a)
    a(f"s_branch {lnc}_j")
    a.label(lnc)
    a("s_mov_b32 s5, s33"); a("s_mov_b32 s4, s34")
    touch(a, W, WOF, 1, 16)
    touch(a, GT_, 0, 1, 17)
    a("s_mov_b32 s33, s5"); a("s_mov_b32 s34, s4")
    a.label(lnc + "_j")
    a("s_barrier")
    g16(a, PB, rd, 1, True, ACC, False, FB)
    planar_epi(a, ACC, 7, 8, 9, 10, 11, OP, 35, "sc1")
    stats_out(a, L_SUM, S_CG, S_PS, ST2, OP)
    a(f"s_branch {lc}")
    a.label(l2)
    a("v_lshlrev_b32 v7, 10, v13"); a("v_lshl_or_b32 v7, v14, 3, v7")
    a("v_add_u32 v8, 16384, v7")
    a(f"s_lshl_b32 s35, s{S_PS}, 15"); a(f"s_lshl_b32 s32, s{S_CG}, 8"); a("s_add_u32 s35, s35, s32")
    a("s_lshl_b32 s32, s24, 5"); a("s_add_u32 s35, s35, s32")
    a(f"s_lshl_b32 s32, s{S_CG}, 3"); a("s_add_u32 s32, s32, s24"); a("s_lshl_b32 s32, s32, 10")
    a(f"s_lshl_b32 s30, s{S_PS}, 15"); a("s_add_u32 s32, s32, s30"); a(f"s_add_u32 s32, s32, {X3B}")
    a("v_lshlrev_b32 v9, 5, v13"); a("v_lshl_or_b32 v9, v14, 3, v9")
    poll(lambda: None, lambda: None)
    a("s_waitcnt lgkmcnt(0)")
    stamp(a, 12)
    a("s_barrier")
    a(f"buffer_load_dwordx2 {v(OP,2)}, v9, {W}, s32 offen sc1")
    a(f"buffer_load_dwordx2 {v(OP+2,2)}, v9, {W}, s32 offen offset:512 sc1")
    g16(a, PB, rd, 1, True, ACC, True, FB)
    a("s_waitcnt vmcnt(0)")
    for i in range(4):
        a(f"v_lshlrev_b32 v{OP+4+2*i}, 16, v{OP+i}")
        a(f"v_and_b32 v{OP+5+2*i}, 0xffff0000, v{OP+i}")
    for i in range(8): a(f"v_add_f32 v{ACC+i}, v{ACC+i}, v{OP+4+i}")
    for t in range(2):
        a(f"v_cvt_pk_bf16_f32 v{OP+2*t}, v{ACC+4*t}, v{ACC+4*t+1}")
        a(f"v_cvt_pk_bf16_f32 v{OP+2*t+1}, v{ACC+4*t+2}, v{ACC+4*t+3}")
        a(f"buffer_store_dwordx2 {v(OP+2*t,2)}, v{7+t}, s[{SRD_O}:{SRD_O+3}], s35 offen")
    a(f"s_branch {lend}")
    a.label(lc)

def k_mega(a, name):
    kernel_head(a, name)
    end = name + "_end"; lend = a.uid("fin")
    cold = []
    a("s_cmp_ge_u32 s2, 256"); a(f"s_cbranch_scc1 {end}")
    stamp_init(a)
    a(f"s_load_dwordx2 s[36:37], s[0:1], {KA_WS}")
    a(f"s_load_dwordx2 s[4:5], s[0:1], {KA_OUT}")
    code_prefetch(a, name, end, 4, 87)
    lane_ids(a)
    table_srd(a, SRD_A, "gtab", 0x80000)
    a(f"s_and_b32 s{S_RB}, s2, 6"); a(f"s_lshl_b32 s{S_RB}, s{S_RB}, 1")
    a(f"s_lshr_b32 s{S_G}, s2, 6"); a(f"s_add_u32 s{S_RB}, s{S_RB}, s{S_G}")
    a(f"s_bfe_u32 s{S_G}, s2, 0x30003")
    a("s_and_b32 s32, s2, 1"); a("s_lshl_b32 s32, s32, 3"); a(f"s_add_u32 s{S_G}, s{S_G}, s32")
    a(f"s_lshl_b32 s{S_Q}, s{S_RB}, 2")
    a(f"s_lshr_b32 s{S_PS}, s{S_G}, 2"); a(f"s_add_u32 s{S_PS}, s{S_PS}, s{S_Q}")
    a(f"s_and_b32 s{S_CG}, s{S_G}, 3")
    a(f"s_add_u32 s{S_Q}, s{S_Q}, s25")
    a(f"s_mov_b32 s{S_TIN}, {T0}"); a(f"s_mov_b32 s{S_TOUT}, {T1}"); a(f"s_mov_b32 s{S_ST}, {ST0}")
    a(f"s_mov_b32 s{S_KV}, {KV1}"); a(f"s_mov_b32 s{S_O}, {O1}"); a(f"s_mov_b32 s{S_L}, 0")
    a(f"s_mov_b32 s{S_SPIN}, {SPIN}")
    attn_bases(a)
    a("s_waitcnt lgkmcnt(0)")
    stamp(a, 1)
    mk_srd(a, SRD_WS, 36, WS_SIZE); mk_srd(a, SRD_O, 4, 0x200000)
    lloop, lh, latt = a.uid("layer"), a.uid("helper"), a.uid("attn")
    a("s_mov_b32 s62, 1")
    a.label(lloop)
    def first():
        ln = a.uid("nfirst")
        a("s_cmp_eq_u32 s62, 0"); a(f"s_cbranch_scc1 {ln}")
        a("s_cmp_eq_u32 s62, 2"); a("s_mov_b32 s62, 0"); a(f"s_cbranch_scc1 {ln}_m")
        w_load(a)
        a("s_call_b64 s[6:7], GEN_TW")
        masks_(a)
        a.label(ln + "_m")
        a("s_call_b64 s[6:7], GEN_MAT")
        a.label(ln)
    a("s_cmp_ge_u32 s24, 4"); a(f"s_cbranch_scc1 {lh}")
    phase_c(a, first)
    phase_c_compute(a)
    phase_q_m(a, cold)
    a(f"s_branch {latt}")
    a.label(lh)
    lnb, lnb2 = a.uid("nob"), a.uid("nob2")
    a(f"s_cmp_lg_u32 s{S_L}, 0"); a(f"s_cbranch_scc1 {lnb}")
    if "f3" not in os.environ.get("KX", ""):
        for i in range(4): a(f"v_mov_b32 v{8+i}, -1")
        a("v_and_b32 v4, 255, v0"); a("v_lshlrev_b32 v4, 4, v4")
        a("s_lshl_b32 s34, s2, 13")
        fill(a, 4, 34, [T2, O1], 2)
    a("s_and_b32 s33, s2, 1"); a("s_lshl_b32 s33, s33, 18")
    a("s_lshr_b32 s34, s2, 3"); a("s_lshl_b32 s34, s34, 13"); a("s_add_u32 s33, s33, s34")
    a("s_lshl_b32 s34, s25, 19"); a("s_add_u32 s33, s33, s34")
    a(f"s_add_u32 s33, s33, {WP}")
    a("v_lshlrev_b32 v4, 7, v1")
    a("s_cmp_eq_u32 s25, 3"); a("s_cselect_b32 s33, 0x7ff00000, s33")
    a(f"buffer_load_dword v64, v4, {W}, s33 offen")
    masks_(a)
    a("s_lshl_b32 s33, s25, 13")
    a(f"s_lshl_b32 s34, s{S_G}, 15"); a("s_add_u32 s34, s34, s33")
    a("s_barrier")
    btile_dma(a, W, 34, WP + 16 * 32768, L_BK)
    btile_dma(a, W, 34, WP + 32 * 32768, L_BV)
    a("s_waitcnt vmcnt(16)")
    a(f"s_branch {lnb2}")
    a.label(lnb)
    a("s_barrier")
    a.label(lnb2)
    a(f"s_lshl_b32 s60, s{S_CG}, 3"); a("s_add_u32 s60, s60, s24"); a("s_lshl_b32 s60, s60, 14")
    a(f"s_lshl_b32 s33, s{S_L}, 19"); a("s_add_u32 s60, s60, s33"); a(f"s_add_u32 s60, s60, {WOP}")
    NP1 = int(os.environ.get("NP1", "8"))
    def hp(lo, hi):
        for i in range(lo, hi):
            if i and i % 4 == 0: a("s_add_u32 s60, s60, 4096")
            a(f"buffer_load_dwordx4 {v(PB+4*i,4)}, v6, {W}, s60 offen offset:{(i&3)*1024}")
    lnp = a.uid("nhp")
    a(f"s_cmp_eq_u32 s{S_L}, 0"); a(f"s_cbranch_scc1 {lnp}")
    hp(0, 16)
    a.label(lnp)
    a("s_barrier")
    a("s_barrier")
    a("s_waitcnt vmcnt(0)")
    phase_q_h(a, cold)
    a.label(latt)
    phase_attn(a, cold)
    phase_p(a, lend)
    if DEBUG:
        stamp_out(a, 1)
        for i in range(1, 14): a(f"s_mov_b64 s[{64+2*i}:{65+2*i}], 0")
        a("s_memrealtime s[92:93]"); a("s_memrealtime s[64:65]"); a("s_mov_b64 exec, -1"); a("s_mov_b64 s[96:97], 0")
    a(f"s_mov_b32 s{S_TIN}, {T2}"); a(f"s_mov_b32 s{S_TOUT}, {T3}"); a(f"s_mov_b32 s{S_ST}, {ST2}")
    a(f"s_mov_b32 s{S_KV}, {KV2}"); a(f"s_mov_b32 s{S_O}, {O2}"); a(f"s_mov_b32 s{S_L}, 1")
    a(f"s_branch {lloop}")
    a.label("GEN_TW"); gen_tw(a); a("s_nop 1"); a("s_setpc_b64 s[6:7]")
    a.label("GEN_MAT"); gen_mat(a); a("s_nop 1"); a("s_setpc_b64 s[6:7]")
    for c in list(cold): c()
    a.label(lend)
    stamp_out(a, 2)
    a.label(end); a("s_endpgm")
    return kd(name, 256), MEGA_LDS
```
